```python
import torch

def _softmax(x, axis=-1):
    return torch.softmax(x, dim=axis)
def _gelu(x):
    return torch.nn.functional.gelu(x, approximate="tanh")
def _silu(x):
    return torch.nn.functional.silu(x)
def _sigmoid(x):
    return torch.sigmoid(x)
def _layernorm(x, axis=-1, eps=1e-5):
    m = x.mean(dim=axis, keepdim=True)
    v = x.var(dim=axis, keepdim=True, unbiased=False)
    return (x - m) / torch.sqrt(v + eps)
def _scatter_add(tgt, idx, src, axis=0):
    return tgt.clone().index_add_(axis, idx, src)
def _segment_sum(src, seg, n):
    out = torch.zeros((n,) + src.shape[1:], dtype=src.dtype)
    return out.index_add_(0, seg, src)
def _pad(x, pw):
    flat = tuple(v for pair in reversed(pw) for v in pair)
    return torch.nn.functional.pad(x, flat)

kernel_name = 'concat_heads__gqa_block_cached__mha_block_cached__near_ridge'

def setup_inputs():

    _w = (lambda a: (lambda t: t.to(torch.bfloat16) if t.is_floating_point() else t)(torch.as_tensor(a)))
    def _A_setup():
        B, Sq, D = 32, 32, 640
        Hq, Hkv, Sk, Dh = 32, 32, 32, 128
        assert Hq % Hkv == 0, (Hq, Hkv)
        return {
            "x": _w((lambda *s: torch.randn(*s, dtype=torch.bfloat16) * 0.8)(B, Sq, D)),
            "k_cache": _w((lambda *s: torch.randn(*s, dtype=torch.bfloat16) * 0.8)(B, Hkv, Sk, Dh)),
            "v_cache": _w((lambda *s: torch.randn(*s, dtype=torch.bfloat16) * 0.05)(B, Hkv, Sk, Dh)),
            "wq": _w((lambda *s: torch.randn(*s, dtype=torch.bfloat16) * 0.8)(D, Hq * Dh) * (D ** -0.5)),
            "wo": _w((lambda *s: torch.randn(*s, dtype=torch.bfloat16) * 0.05)(Hq * Dh, D) * ((Hq * Dh) ** -0.5)),
        }
    _A_in = _A_setup()

    def _B_setup():
        B, Sq, D = 32, 32, 640
        H, Sk, Dh = 32, 32, 128
        return {
            "x": _w((lambda *s: torch.randn(*s, dtype=torch.bfloat16) * 0.8)(B, Sq, D)),
            "k_cache": _w((lambda *s: torch.randn(*s, dtype=torch.bfloat16) * 0.8)(B, H, Sk, Dh)),
            "v_cache": _w((lambda *s: torch.randn(*s, dtype=torch.bfloat16) * 0.05)(B, H, Sk, Dh)),
            "wq": _w((lambda *s: torch.randn(*s, dtype=torch.bfloat16) * 0.8)(D, H * Dh) * (D ** -0.5)),
            "wo": _w((lambda *s: torch.randn(*s, dtype=torch.bfloat16) * 0.05)(H * Dh, D) * ((H * Dh) ** -0.5)),
        }
    _B_in = _B_setup()

    return {
        "A_x": _A_in["x"],
        "A_k_cache": _A_in["k_cache"],
        "A_v_cache": _A_in["v_cache"],
        "A_wq": _A_in["wq"],
        "A_wo": _A_in["wo"],
        "B_x": _B_in["x"],
        "B_k_cache": _B_in["k_cache"],
        "B_v_cache": _B_in["v_cache"],
        "B_wq": _B_in["wq"],
        "B_wo": _B_in["wo"],
    }

def reference(A_x, A_k_cache, A_v_cache, A_wq, A_wo, B_x, B_k_cache, B_v_cache, B_wq, B_wo):
    def _A_ref(x, k_cache, v_cache, wq, wo):
        B, Sq, D = x.shape
        Hq, Dh = 32, 128
        Hkv = k_cache.shape[1]
        rep = Hq // Hkv
        q = (lambda x, *d: x.permute(*d))((x @ wq).reshape(B, Sq, Hq, Dh), 0, 2, 1, 3)
        k = (lambda x, n, axis: torch.repeat_interleave(x, n, dim=axis))(k_cache, rep, axis=1)
        v = (lambda x, n, axis: torch.repeat_interleave(x, n, dim=axis))(v_cache, rep, axis=1)
        scores = torch.einsum("bhqd,bhkd->bhqk", q, k) * (Dh ** -0.5)
        p = _softmax(scores, axis=-1)
        o = torch.einsum("bhqk,bhkd->bhqd", p, v)
        return (lambda x, *d: x.permute(*d))(o, 0, 2, 1, 3).reshape(B, Sq, Hq * Dh) @ wo

    def _B_ref(x, k_cache, v_cache, wq, wo):
        B, Sq, D = x.shape
        H, Dh = 32, 128
        q = (lambda x, *d: x.permute(*d))((x @ wq).reshape(B, Sq, H, Dh), 0, 2, 1, 3)
        scores = torch.einsum("bhqd,bhkd->bhqk", q, k_cache) * (Dh ** -0.5)
        p = _softmax(scores, axis=-1)
        o = torch.einsum("bhqk,bhkd->bhqd", p, v_cache)
        return (lambda x, *d: x.permute(*d))(o, 0, 2, 1, 3).reshape(B, Sq, H * Dh) @ wo

    a = _A_ref(A_x, A_k_cache, A_v_cache, A_wq, A_wo)
    b = _B_ref(B_x, B_k_cache, B_v_cache, B_wq, B_wo)
    return torch.concatenate([a, b], axis=-1)
```

```python
NAME = 'concat_heads__gqa_block_cached__mha_block_cached__near_ridge'
class Asm:
    def __init__(self):
        self.L = []
    def __call__(self, s=''):
        for ln in s.split('\n'):
            ln = ln.strip()
            if not ln: continue
            if ln.endswith(':'): self.L.append(ln)
            else: self.L.append('    ' + ln)
    def text(self): return '\n'.join(self.L) + '\n'

def kernel_head(name):
    return f""".globl {name}
.p2align 8
.type {name},@function
{name}:
"""
def kernel_desc(name, vgpr, accum, sgpr=102, extra=''):
    return f""".amdhsa_kernel {name}
  .amdhsa_next_free_vgpr {vgpr}
  .amdhsa_next_free_sgpr {sgpr}
  .amdhsa_accum_offset {accum}
  .amdhsa_group_segment_fixed_size 0
  .amdhsa_kernarg_size 104
  .amdhsa_user_sgpr_count 2
  .amdhsa_user_sgpr_kernarg_segment_ptr 1
  .amdhsa_system_sgpr_workgroup_id_x 1
{extra}.end_amdhsa_kernel
"""
def module(launch_lines, kernels):
    s = ''.join(l + '\n' for l in launch_lines)
    s += '.amdgcn_target "amdgcn-amd-amdhsa--gfx950"\n.text\n'
    for name, body, vgpr, accum, sgpr in kernels:
        s += kernel_head(name) + body
    s += '.section .rodata,"a"\n'
    for name, body, vgpr, accum, sgpr in kernels:
        s += '.p2align 6\n' + kernel_desc(name, vgpr, accum, sgpr)
    return s
```

```python
import re
RX = re.compile(r'\b([va])(?:\[(\d+):(\d+)\]|(\d+))')
SX = re.compile(r'\bs(?:\[(\d+):(\d+)\]|(\d+))')
TRANS = ('v_exp_f32', 'v_rcp_f32', 'v_log_f32', 'v_rsq_f32', 'v_sqrt_f32')
def regs(tok):
    out = []
    for m in RX.finditer(tok):
        k = m.group(1)
        if m.group(4) is not None: out.append((k, int(m.group(4))))
        else: out += [(k, i) for i in range(int(m.group(2)), int(m.group(3)) + 1)]
    return out
def sregs(tok):
    out = []
    for m in SX.finditer(tok):
        if m.group(3) is not None: out.append(int(m.group(3)))
        else: out += list(range(int(m.group(1)), int(m.group(2)) + 1))
    if 'vcc' in tok: out += [106, 107]
    return out
def split_ops(s):
    out = []; d = 0; cur = ''
    for ch in s:
        if ch == '[': d += 1
        if ch == ']': d -= 1
        if ch == ',' and d == 0: out.append(cur.strip()); cur = ''
        else: cur += ch
    if cur.strip(): out.append(cur.strip())
    return out
class Ins:
    def __init__(s, text):
        s.text = text
        t = text.split(None, 1); s.op = t[0]; ops = split_ops(t[1]) if len(t) > 1 else []
        s.ops = ops; op = s.op
        s.kind = 'other'; s.d = []; s.u = []; s.c = []; s.sd = []; s.su = []; s.m0w = False
        if op.startswith('v_mfma'):
            s.kind = 'mfma'; s.d = regs(ops[0]); s.u = regs(ops[1]) + regs(ops[2]); s.c = regs(ops[3])
        elif op.startswith('v_permlane'):
            s.kind = 'perm'; s.d = regs(ops[0]) + regs(ops[1]); s.u = list(s.d)
        elif op.startswith('v_readfirstlane') or op.startswith('v_readlane'):
            s.kind = 'rfl'; s.sd = sregs(ops[0]); s.u = regs(ops[1])
        elif op.startswith('v_cmp'):
            s.kind = 'valu'; s.sd = sregs(ops[0]); s.u = sum((regs(o) for o in ops[1:]), []); s.su = sum((sregs(o) for o in ops[1:]), [])
        elif op.startswith('v_'):
            s.kind = 'trans' if op in TRANS else 'valu'
            s.d = regs(ops[0]); s.u = sum((regs(o) for o in ops[1:]), []); s.su = sum((sregs(o) for o in ops[1:]), [])
            if op.startswith('v_dot2c') or op.startswith('v_fmac') : s.u += s.d
        elif op.startswith('ds_read'):
            s.kind = 'ds'; s.d = regs(ops[0]); s.u = regs(ops[1].split()[0])
        elif op.startswith('ds_write'):
            s.kind = 'ds'; s.u = regs(ops[0]) + regs(ops[1].split()[0])
        elif op.startswith('buffer_') or op.startswith('global_'):
            s.kind = 'vmem'; s.lds = text.rstrip().endswith(' lds')
            s.store = 'store' in op or 'atomic' in op
            if s.lds: s.u = regs(ops[0])
            elif op.startswith('buffer_'):
                if s.store: s.u = regs(ops[0]) + regs(ops[1]); s.sdata = regs(ops[0])
                else: s.d = regs(ops[0]); s.u = regs(ops[1])
            else:
                if s.store: s.u = regs(ops[0]) + regs(ops[1]); s.sdata = regs(ops[1])
                else: s.d = regs(ops[0]); s.u = regs(ops[1])
            s.su = sum((sregs(o) for o in ops), [])
        elif op.startswith('s_'):
            s.kind = 'salu'
            if ops and ops[0] == 'm0': s.m0w = True
        s.states = 1
        if op == 's_nop': s.states = int(ops[0]) + 1
class Em:
    def __init__(s):
        s.L = []; s.vmq = []; s.lgq = []; s.maxlg = 0; s.maxvm = 0
    def __call__(s, text):
        for ln in text.split('\n'):
            ln = ln.strip()
            if ln: s.L.append(ln)
    def vm(s, text, tag):
        s(text); s.vmq.append(tag); s.maxvm = max(s.maxvm, len(s.vmq)); assert len(s.vmq) <= 63, 'vm overflow'
    def lg(s, text, tag):
        if len(s.lgq) >= 15:
            s('s_waitcnt lgkmcnt(14)'); s.lgq = s.lgq[-14:]
        s(text); s.lgq.append(tag); s.maxlg = max(s.maxlg, len(s.lgq))
    def _n(s, q, tags):
        idx = -1
        for i, t in enumerate(q):
            if t in tags: idx = i
        return idx
    def wait(s, vm=None, lg=None):
        parts = []
        if vm is not None:
            vm = [vm] if not isinstance(vm, (list, set)) else vm
            i = s._n(s.vmq, vm) if vm != ['*'] else len(s.vmq) - 1
            if i >= 0: s.vmq = s.vmq[i+1:]; parts.append(f'vmcnt({len(s.vmq)})')
        if lg is not None:
            lg = [lg] if not isinstance(lg, (list, set)) else lg
            i = s._n(s.lgq, lg) if lg != ['*'] else len(s.lgq) - 1
            if i >= 0: s.lgq = s.lgq[i+1:]; parts.append(f'lgkmcnt({len(s.lgq)})')
        if parts: s('s_waitcnt ' + ' '.join(parts))
    def finish(s):
        out = []; pos = 0
        st = dict(vw={}, mw={}, mc={}, tw={}, sw={}, sdat={}, m0=-99)
        saves = {}
        nn = 0
        for ln in s.L:
            if ln.startswith('@save'):
                import copy; saves[ln.split()[1]] = (copy.deepcopy(st), pos); continue
            if ln.startswith('@restore'):
                import copy; o, p = saves[ln.split()[1]]; st = copy.deepcopy(o); pos = p; continue
            if ln.endswith(':') or ln.startswith(';') or ln.startswith('.'):
                out.append(ln); continue
            I = Ins(ln); need = 0
            def req(p, n):
                nonlocal need
                need = max(need, n - (pos - p - 1))
            allr = I.u + I.c
            if I.kind == 'mfma':
                for r in allr:
                    if r in st['vw']: req(st['vw'][r], 2)
                for r in I.u:
                    if r in st['mw']: req(st['mw'][r][0], 12)
                for r in I.c:
                    if r in st['mw'] and st['mw'][r][1] != tuple(I.c): req(st['mw'][r][0], 10)
                if not I.c:
                    for r in I.d:
                        if r in st['mw'] and st['mw'][r][1] != tuple(I.d): req(st['mw'][r][0], 10)
            elif I.kind in ('valu', 'trans', 'perm', 'rfl'):
                for r in I.u + I.d:
                    if r in st['mw']: req(st['mw'][r][0], 12)
                for r in I.d:
                    if r in st['mc']: req(st['mc'][r], 7)
                    if r in st['sdat']: req(st['sdat'][r], 2)
                for r in I.u:
                    if r in st['tw']: req(st['tw'][r], 1)
                    if I.kind == 'perm' and r in st['vw']: req(st['vw'][r], 2)
                    if I.kind == 'rfl' and r in st['vw']: req(st['vw'][r], 1)
                for r in I.su:
                    if r in st['sw']: req(st['sw'][r], 2)
            elif I.kind in ('ds', 'vmem'):
                for r in I.u + I.d:
                    if r in st['mw']: req(st['mw'][r][0], 12)
                for r in I.d:
                    if r in st['sdat']: req(st['sdat'][r], 1)
                for r in I.u:
                    if r in st['tw']: req(st['tw'][r], 1)
                if I.kind == 'vmem':
                    for r in I.su:
                        if r in st['sw']: req(st['sw'][r], 5)
                    if I.lds: req(st['m0'], 1)
            while need > 0:
                k = min(need, 16); out.append(f'    s_nop {k-1}'); pos += k; need -= k; nn += k
            out.append('    ' + ln)
            p = pos + I.states - 1
            if I.kind == 'mfma':
                for r in I.d: st['mw'][r] = (p, tuple(I.d)); st['vw'].pop(r, None)
                for r in I.c: st['mc'][r] = p
            elif I.kind in ('valu', 'trans', 'perm', 'rfl'):
                for r in I.d:
                    st['vw'][r] = p; st['mw'].pop(r, None)
                    if I.kind == 'trans': st['tw'][r] = p
                    else: st['tw'].pop(r, None)
                for r in I.sd: st['sw'][r] = p
            elif I.kind == 'vmem' and I.store and not I.lds:
                if len(I.sdata) >= 3:
                    for r in I.sdata: st['sdat'][r] = p
            elif I.kind == 'salu':
                if I.m0w: st['m0'] = p
            pos += I.states
        s.nops = nn
        return '\n'.join(out) + '\n'
```

```python
import sys, math
from em import Em
from asmlib import NAME, module
from tail import *
STAMP_WS = 0x8000000
DEF = dict(nt_wq='', nt_x='', nt_kv='', nt_wo='', st='sc1', rd='', stamps=False, kvT=(1, 9, 17, 25), stag=1, G=5, rot=True, R=6, XS=4, rotx=True, spread=True)

def mf(d, a, b, c): return f'v_mfma_f32_32x32x16_bf16 {d}, {a}, {b}, {c}'
def vr(b, n, k='v'): return f'{k}[{b}:{b+n-1}]'

def k1(o):
    e = Em(); ns = [0]
    R = o['R']; XS = o['XS']
    RINGB = R*4096; XB = 4*RINGB; KVB = XB + max(XS, 4)*8192
    assert KVB + 32768 <= 163840
    ODELTA = KVB - XB
    def stamp():
        if o['stamps']:
            e.wait(lg='*'); e(f's_memtime s[{82+2*ns[0]}:{83+2*ns[0]}]\ns_waitcnt lgkmcnt(0)'); ns[0] += 1
    def trace(reg, idx):
        if o.get('trace'):
            e.wait(lg='*'); e(f's_memtime s[96:97]\ns_waitcnt lgkmcnt(0)\nv_writelane_b32 v{reg}, s96, {idx}')
    e('s_cmp_ge_u32 s2, 256\ns_cbranch_scc1 L_end1')
    e('s_load_dwordx16 s[36:51], s[0:1], 0\ns_load_dwordx4 s[52:55], s[0:1], 64\ns_load_dwordx2 s[28:29], s[0:1], 96')
    if o['stamps']: e('s_memrealtime s[100:101]')
    e('v_lshrrev_b32 v1, 6, v0\nv_and_b32 v0, 63, v0\nv_readfirstlane_b32 s32, v1')
    e('''s_and_b32 s33, s2, 7
         s_lshr_b32 s33, s33, 2
         s_and_b32 s34, s2, 3
         s_lshl_b32 s34, s34, 1
         s_bfe_u32 s79, s2, 0x10003
         s_add_u32 s34, s34, s79
         s_lshr_b32 s35, s2, 4''')
    if o['rot'] == 2: e('s_and_b32 s81, s35, 1')
    elif o['rot'] == 3: e('s_and_b32 s81, s35, 3')
    elif o['rot']: e('s_mul_i32 s81, s35, 10\ns_lshr_b32 s81, s81, 4')
    else: e('s_mov_b32 s81, 0')
    G = o.get('G', 10)
    e(f's_mul_i32 s6, s35, {G}\ns_lshr_b32 s6, s6, 4\ns_mul_i32 s6, s6, {10//G}')
    e(f's_and_b32 s5, s35, {o.get("NC", 4)-1}')
    if o['rotx']: e('s_and_b32 s7, s34, 1\ns_mul_i32 s7, s7, 5\ns_add_u32 s7, s7, s6\ns_sub_u32 s79, s7, 10\ns_cmp_ge_u32 s7, 10\ns_cselect_b32 s7, s79, s7')
    else: e('s_mov_b32 s7, s6')
    e('''v_lshrrev_b32 v16, 4, v0
         v_and_b32 v17, 15, v0
         v_lshrrev_b32 v18, 3, v0
         v_and_b32 v19, 7, v0''')
    e('''v_lshrrev_b32 v20, 2, v17
         v_xor_b32 v20, v20, v16
         v_lshlrev_b32 v20, 6, v20
         v_and_b32 v21, 3, v17
         v_lshl_add_u32 v20, v21, 4, v20
         v_lshl_add_u32 v2, v16, 13, v20
         v_add_u32 v3, 31744, v2
         v_add_u32 v4, 63488, v2
         v_add_u32 v5, 95232, v2''')
    if o.get('fakewq'): e('v_lshlrev_b32 v2, 4, v0\nv_mov_b32 v3, v2\nv_mov_b32 v4, v2\nv_mov_b32 v5, v2')
    if o.get('fakewq2'): e('v_lshlrev_b32 v2, 4, v17\nv_mul_u32_u24 v3, 8448, v16\nv_add_u32 v2, v2, v3\nv_add_u32 v3, 32768, v2\nv_add_u32 v4, 65536, v2\nv_add_u32 v5, 98304, v2')
    e('''v_lshl_add_u32 v24, v16, 8, v20
         v_xor_b32 v21, v17, v16
         v_lshlrev_b32 v21, 4, v21
         v_lshl_add_u32 v25, v16, 8, v21
         v_xor_b32 v26, 64, v25
         v_xor_b32 v27, 128, v25
         v_xor_b32 v28, 192, v25''')
    e('''s_mul_i32 s79, s32, 20480
         v_lshrrev_b32 v20, 1, v18
         v_xor_b32 v20, v20, v19
         v_lshlrev_b32 v20, 4, v20
         v_mul_u32_u24 v21, 1280, v18
         v_add_u32 v21, s79, v21
         v_add_u32 v6, v21, v20
         v_xor_b32 v20, 64, v20
         v_add_u32 v7, v21, v20
         v_add_u32 v7, 9216, v7''')
    e(f'''s_mul_i32 s64, s32, {RINGB}
         s_lshl_b32 s65, s32, 13
         s_add_u32 s65, s65, {KVB}
         s_lshl_b32 s66, s32, 11
         s_add_u32 s66, s66, {XB}
         s_lshl_b32 s67, s34, 2
         s_add_u32 s67, s67, s32''')
    e('''s_lshl_b32 s58, s67, 8
         s_add_u32 s57, s58, 5242880
         s_lshl_b32 s79, s7, 19
         s_add_u32 s56, s58, s79
         s_mul_i32 s61, s35, 81920
         s_add_u32 s60, s61, 1280
         s_lshl_b32 s79, s7, 7
         s_add_u32 s59, s61, s79
         s_lshl_b32 s62, s35, 6
         s_add_u32 s62, s62, s67
         s_lshl_b32 s62, s62, 13
         s_add_u32 s63, s62, 262144''')
    if o.get('fakewq'): e('s_mul_i32 s58, s67, 163840\ns_add_u32 s57, s58, 163840\ns_lshl_b32 s79, s7, 14\ns_add_u32 s56, s58, s79')
    e('s_waitcnt lgkmcnt(0)')
    e('s_cmp_eq_u32 s33, 0')
    for srd, pa, pb, sz in ((12, 36, 46, 1310720), (16, 38, 48, 8388608), (20, 40, 50, 8388608), (8, 42, 52, 5242880), (24, 44, 54, 5242880)):
        e(f's_cselect_b32 s{srd}, s{pa}, s{pb}\ns_cselect_b32 s{srd+1}, s{pa+1}, s{pb+1}\ns_mov_b32 s{srd+2}, {sz}\ns_mov_b32 s{srd+3}, 0x20000')
    e(f's_mov_b32 s30, {0x10000000}\ns_mov_b32 s31, 0x20000')
    stamp()
    def dma_wq(n):
        L = [lambda: e(f's_add_u32 m0, s64, {(n%R)*4096}')]
        for i in range(4):
            L.append(lambda i=i: e.vm(f'buffer_load_dwordx4 v{2+i}, s[8:11], s56 offen offset:{i*1024} {o["nt_wq"]} lds', ('w', n)))
        def adv():
            e('s_add_u32 s56, s56, %d' % (4096 if o.get('fakewq') else 131072))
            if n % 4 == 3: e('s_cmp_eq_u32 s56, s57\ns_cselect_b32 s56, s58, s56')
        L.append(adv); return L
    def oinfo(j):
        r = j >> 4; sb = j & 3
        i = ((j & 15) >> 2) if r < 2 else 2*((j-32) >> 2)
        return r, i, sb
    def dma_wo(j):
        n = 40 + j; r, i, sb = oinfo(j)
        def pre():
            if sb == 0: e(f's_add_u32 s75, s{68+i}, s{72+r}')
            else: e('s_add_u32 s75, s75, 40960')
            e(f's_add_u32 m0, s64, {(n%R)*4096}')
        L = [pre]
        for q in range(4):
            L.append(lambda q=q: e.vm(f'buffer_load_dwordx4 v{2+q}, s[24:27], s75 offen offset:{q*1024} {o["nt_wo"]} lds', ('w', n)))
        L.append(lambda: None); return L
    def dma_ring(n):
        if n < 40: return dma_wq(n)
        if n < 80: return dma_wo(n-40)
        return None
    def dma_x(s):
        def f():
            e(f's_add_u32 m0, s66, {(s%XS)*8192}')
            for i in range(2): e.vm(f'buffer_load_dwordx4 v{6+i}, s[12:15], s59 offen offset:{i*1024} {o["nt_x"]} lds', ('x', s))
            e('s_add_u32 s59, s59, 128\ns_cmp_eq_u32 s59, s60\ns_cselect_b32 s59, s61, s59')
        return f
    def dma_kv(j):
        isv = j >= 2; srd = 's[20:23]' if isv else 's[16:19]'; so = 62 + (j & 1)
        def half(hh):
            def f():
                if hh == 0:
                    e.wait(lg=[('c', j-1)]); e('s_mov_b32 m0, s65'); sr = f's{so}'
                else:
                    e(f's_add_u32 s79, s{so}, 4096\ns_add_u32 m0, s65, 4096'); sr = 's79'
                for i in range(4 if not o.get('skipkv') else 0):
                    e.vm(f'buffer_load_dwordx4 v{24 if isv else 25+i}, {srd}, {sr} offen offset:{i*1024} {o["nt_kv"]} lds', ('kv', j))
            return f
        return [half(0), half(1)]
    P0 = o.get('P0', 2)
    dma_x(0)()
    for n in range(P0):
        for f in dma_wq(n): f()
    FU = o.get('fuse')
    if FU: mb_clear(e)
    ring_at = {}; nxt = P0
    for t in range(80):
        k = 0
        while nxt <= t + R and nxt < 80 and k < o.get('ramp', 3):
            ring_at.setdefault(t, []).append(nxt); nxt += 1; k += 1
    x_at = {}
    x_at.setdefault(o.get('x1T', 0), []).append(1)
    if o.get('xjit'):
        for s_ in range(2, 10): x_at.setdefault(4*(s_ - 2) + 3, []).append(s_)
    else:
        for s_ in range(2, XS): x_at.setdefault(3, []).append(s_)
        for s_ in range(XS, 10): x_at.setdefault(4*(s_ - XS) + 3, []).append(s_)
    e('''v_lshrrev_b32 v20, 5, v0
         v_bfe_u32 v21, v0, 4, 1
         v_bfe_u32 v22, v0, 2, 2
         v_and_b32 v23, 3, v0''')
    e('''v_lshl_add_u32 v8, v20, 3, v22
         v_lshlrev_b32 v8, 8, v8
         v_lshl_add_u32 v8, v22, 6, v8
         v_lshl_add_u32 v8, v21, 5, v8
         v_and_b32 v16, 1, v23
         v_lshrrev_b32 v17, 1, v23
         v_lshl_add_u32 v16, v16, 1, v17
         v_lshl_add_u32 v8, v16, 3, v8
         v_add_u32 v8, s64, v8
         v_xor_b32 v9, 64, v8
         v_xor_b32 v10, 128, v8
         v_xor_b32 v11, 192, v8''')
    e('''v_lshl_add_u32 v29, v20, 2, v22
         v_lshlrev_b32 v29, 8, v29
         v_lshl_add_u32 v29, v22, 6, v29
         v_lshl_add_u32 v29, v21, 5, v29
         v_lshl_add_u32 v29, v23, 3, v29
         v_add_u32 v29, s65, v29''')
    e('''v_lshl_add_u32 v31, v20, 2, v22
         v_lshlrev_b32 v31, 7, v31
         v_lshrrev_b32 v16, 1, v22
         v_lshl_add_u32 v31, v16, 6, v31
         v_lshl_add_u32 v31, v21, 5, v31
         v_lshl_add_u32 v31, v23, 3, v31
         v_add_u32 v31, s64, v31''')
    e(f'''v_and_b32 v16, 31, v0
         v_bfe_u32 v17, v0, 1, 3
         v_xor_b32 v17, v17, v20
         v_lshlrev_b32 v17, 4, v17
         v_lshl_add_u32 v12, v16, 7, v17
         v_add_u32 v12, {XB}, v12
         v_xor_b32 v13, 32, v12
         v_xor_b32 v14, 64, v12
         v_xor_b32 v15, 96, v12
         v_and_b32 v17, 15, v0
         v_xor_b32 v17, v17, v20
         v_lshlrev_b32 v17, 4, v17
         v_lshl_add_u32 v30, v16, 8, v17
         v_add_u32 v30, s65, v30''')
    e('s_lshl_b32 s79, s34, 2')
    for i in range(4):
        e(f's_add_u32 s3, s32, {i}\ns_and_b32 s3, s3, 3\ns_add_u32 s3, s3, s79\ns_mul_i32 s{68+i}, s3, 163840')
    e('s_lshr_b32 s3, s32, 1\ns_add_u32 s74, s3, 8\ns_add_u32 s73, s32, 4\ns_mov_b32 s72, s32')
    e('s_lshl_b32 s4, s33, 4\ns_add_u32 s4, s4, s35\ns_mul_i32 s4, s4, 10')
    for r in range(3):
        e(f'''s_add_u32 s{72+r}, s{72+r}, s81
              s_sub_u32 s3, s{72+r}, 10
              s_cmp_ge_u32 s{72+r}, 10
              s_cselect_b32 s{72+r}, s3, s{72+r}
              s_add_u32 s3, s4, s{72+r}
              s_lshl_b32 s3, s3, 3
              s_add_u32 s3, s3, s34
              s_lshl_b32 s{76+r}, s3, 13
              s_lshl_b32 s{72+r}, s{72+r}, 7''')
    c = (128 ** -0.5) * math.log2(math.e)
    import struct
    e(f's_mov_b32 s80, {hex(struct.unpack("<I", struct.pack("<f", c))[0])}')
    AF, BF, ACC = 96, 80, 128
    def reads_q(t):
        b = t & 1; L = []
        s = t >> 2; tt = t & 3
        for qb in range(2):
            L.append(lambda qb=qb: e.lg(f'ds_read_b128 {vr(BF+b*8+qb*4,4)}, v{12+tt} offset:{(s%XS)*8192+qb*4096}', ('f', t)))
        for db in range(4):
            for u in range(2):
                L.append(lambda db=db, u=u: e.lg(f'ds_read_b64_tr_b16 {vr(AF+b*16+db*4+2*u,2)}, v{8+db} offset:{(t%R)*4096+u*1024}', ('f', t)))
        return L
    def copy_items(j):
        L = []
        if j < 2:
            for t in range(8):
                def f(t=t):
                    if t: e(f'v_xor_b32 v{16+t}, {t*32}, v30')
                    e.lg(f'ds_read_b128 {vr(j*32+t*4,4,"a")}, v{16+t if t else 30}', ('c', j))
                L.append(f)
        else:
            for db in range(4):
                for t in range(2):
                    for u in range(2):
                        def f(db=db, t=t, u=u):
                            if db and t == 0 and u == 0: e(f'v_xor_b32 v{16+db}, {db*64}, v29')
                            e.lg(f'ds_read_b64_tr_b16 {vr(j*32+(db*2+t)*4+2*u,2,"a")}, v{16+db if db else 29} offset:{(16*t+8*u)*256}', ('c', j))
                        L.append(f)
        return L
    def reads_o(j):
        n = 40 + j; L = []
        for tt in range(2):
            for nb in range(2):
                for u in range(2):
                    L.append(lambda tt=tt, nb=nb, u=u: e.lg(f'ds_read_b64_tr_b16 {vr(192+(j&1)*16+(tt*2+nb)*4+2*u,2,"a")}, v{6+nb} offset:{(n%R)*4096+(16*tt+8*u)*128}', ('f', n)))
        return L
    def run_gaps(mfmas, gaps):
        for g, m in enumerate(mfmas):
            e(m)
            for f in gaps[g]: f()
    def wo_voff():
        e('''v_lshrrev_b32 v2, 3, v0
             v_bfe_u32 v3, v0, 4, 1
             v_lshlrev_b32 v3, 2, v3
             v_and_b32 v4, 7, v0
             v_xor_b32 v3, v3, v4
             v_mul_u32_u24 v2, 1280, v2
             v_lshl_add_u32 v2, v3, 4, v2
             v_add_u32 v3, 9216, v2
             v_add_u32 v4, 18432, v2
             v_add_u32 v5, 27648, v2''')
    e.wait(vm=[('x', 0), ('w', 0)]); e('s_barrier')
    for f in reads_q(0): f()
    kvT = o['kvT']
    copy_sched = {}; late = []; stag = o.get('stag'); NC = o.get('NC', 4); CS = o.get('CS', 2)
    kv_at = {}; cp_at = {}
    lab = [0]
    def ghost(c, fs):
        def f():
            lab[0] += 1; sv = (list(e.vmq), list(e.lgq))
            e(f's_cmp_lg_u32 s5, {c}\ns_cbranch_scc1 Lg{lab[0]}')
            e.lgq = []
            if len(fs) > 5: e('s_waitcnt lgkmcnt(7)')
            for g in fs: g()
            e(f'Lg{lab[0]}:'); e.vmq, e.lgq = sv
        return f
    for j in range(4):
        it = copy_items(j)
        if stag:
            for c in range(NC):
                T = kvT[j] + CS*c
                kv_at.setdefault(T, []).append(ghost(c, dma_kv(j)))
                if j < 3:
                    h = len(it)//2
                    cp_at.setdefault(T + R, []).append(ghost(c, it[:h])); cp_at.setdefault(T + R + 1, []).append(ghost(c, it[h:]))
                else: assert T <= 39 - R - 1
            if j == 3: late = it
            continue
        if kvT[j] + R + (len(it)-1)//4 > 39:
            assert j == 3; late = it; continue
        for q in range(0, len(it), 4): copy_sched.setdefault(kvT[j] + R + q//4, []).extend([(j, f) for f in it[q:q+4]])
    for t in range(40):
        b = t & 1
        e.wait(lg=[('f', t)])
        trace(1, t)
        gaps = [[] for _ in range(8)]
        if t % 4 == 3 and t < 39:
            e.wait(vm=[('x', (t >> 2) + 1)])
            if not o.get('nobar'): e('s_barrier')
        for k, n in enumerate(ring_at.get(t, [])):
            d = dma_ring(n)
            if n == 40: d[0] = (lambda f=d[0]: (wo_voff(), f()))
            if k == 0:
                gaps[0] += [d[0], d[1]]; gaps[1] += [d[2]]; gaps[2] += [d[3]]; gaps[3] += [d[4], d[5]]
            else: gaps[5 + k] += d
        if t < 39:
            rd = reads_q(t + 1)
            gaps[1].append(lambda t=t: e.wait(vm=[('w', t + 1)]))
            for i, f in enumerate(rd): gaps[1 + i//2].append(f)
        for s_ in x_at.get(t, []): gaps[4].append(dma_x(s_))
        if stag:
            gaps[6] += cp_at.get(t, []); gaps[7] += kv_at.get(t, [])
        elif t in kvT:
            kv = dma_kv(kvT.index(t)); gaps[5].append(kv[0]); gaps[6].append(kv[1])
        if t in copy_sched:
            j0 = copy_sched[t][0][0]
            gaps[6].append(lambda j0=j0: e.wait(vm=[('kv', j0)]))
            for i, (j, f) in enumerate(copy_sched[t]): gaps[6 + i//2].append(f)
        order = [(db, qb) for db in range(4) for qb in range(2)] if t < 39 else [(db, qb) for qb in range(2) for db in range(4)]
        ms = [mf(vr(ACC+qb*64+db*16,16), vr(AF+b*16+db*4,4), vr(BF+b*8+qb*4,4), vr(ACC+qb*64+db*16,16) if t else '0') for db, qb in order]
        if t == 39:
            pass
        run_gaps(ms, gaps)
    stamp()
    QP = [32, 64]; S = [96, 16]; P = [112, 120]; OA = [128, 192]; OP = [64, 96]
    e('v_mov_b32 v6, v31\nv_xor_b32 v7, 64, v31')
    def cvtq(qb):
        return [f'v_cvt_pk_bf16_f32 v{QP[qb]+i}, v{ACC+qb*64+2*i}, v{ACC+qb*64+2*i+1}' for i in range(32)]
    def qk(qb):
        return [mf(vr(S[qb],16), vr(qb*32+t*4,4,'a'), vr(QP[qb]+t*4,4), vr(S[qb],16) if t else '0') for t in range(8)]
    def softmax(qb):
        s = S[qb]; m, t2, l = (8, 9, 10) if qb == 0 else (12, 13, 14)
        L = [f'v_max3_f32 v{m}, v{s}, v{s+1}, v{s+2}', f'v_max3_f32 v{t2}, v{s+3}, v{s+4}, v{s+5}']
        L += [f'v_max3_f32 v{m}, v{m}, v{s+6}, v{s+7}', f'v_max3_f32 v{t2}, v{t2}, v{s+8}, v{s+9}']
        L += [f'v_max3_f32 v{m}, v{m}, v{s+10}, v{s+11}', f'v_max3_f32 v{t2}, v{t2}, v{s+12}, v{s+13}']
        L += [f'v_max3_f32 v{m}, v{m}, v{s+14}, v{s+15}', f'v_max_f32 v{m}, v{m}, v{t2}', f'v_mov_b32 v{t2}, v{m}']
        L += [f'v_permlane32_swap_b32 v{m}, v{t2}', f'v_max_f32 v{m}, v{m}, v{t2}', f'v_mul_f32 v{m}, s80, v{m}']
        for i in range(16): L.append(f'v_fma_f32 v{s+i}, v{s+i}, s80, -v{m}')
        for i in range(16): L.append(f'v_exp_f32 v{s+i}, v{s+i}')
        L += [f'v_add_f32 v{l}, v{s}, v{s+1}', f'v_add_f32 v{t2}, v{s+2}, v{s+3}']
        for i in range(4, 16, 2): L += [f'v_add_f32 v{l}, v{l}, v{s+i}', f'v_add_f32 v{t2}, v{t2}, v{s+i+1}']
        L += [f'v_add_f32 v{l}, v{l}, v{t2}', f'v_mov_b32 v{t2}, v{l}', f'v_permlane32_swap_b32 v{l}, v{t2}', f'v_add_f32 v{l}, v{l}, v{t2}', f'v_rcp_f32 v{l}, v{l}']
        for i in range(16): L.append(f'v_mul_f32 v{s+i}, v{s+i}, v{l}')
        for i in range(8): L.append(f'v_cvt_pk_bf16_f32 v{P[qb]+i}, v{s+2*i}, v{s+2*i+1}')
        return L
    def pv(qb):
        return [mf(vr(OA[qb]+db*16,16), vr(64+qb*32+(db*2+t)*4,4,'a'), vr(P[qb]+t*4,4), vr(OA[qb]+db*16,16) if t else '0') for t in range(2) for db in range(4)]
    def cvto(qb):
        L = []
        for t in range(8):
            for i in range(4): L.append(f'v_cvt_pk_bf16_f32 v{OP[qb]+t*4+i}, v{OA[qb]+t*8+2*i}, v{OA[qb]+t*8+2*i+1}')
            L.append(('w', qb, t))
        return L
    def emit_item(x):
        if isinstance(x, tuple):
            _, qb, t = x
            e.lg(f'ds_write_b128 v11, {vr(OP[qb]+t*4,4)} offset:{qb*ODELTA+t*1024}', ('ow',))
        else: e(x)
    def inter(ms, fill, start=0, per=None):
        fill = list(fill); n = len(ms) - start
        per = per or -(-len(fill) // n)
        for g, m in enumerate(ms):
            e(m)
            if g >= start:
                for x in fill[:per]: emit_item(x)
                fill = fill[per:]
        for x in fill: emit_item(x)
    e.wait(lg='*')
    for x in cvtq(0): e(x)
    if late:
        c1 = cvtq(1); ms = qk(0)
        for g, m in enumerate(ms):
            e(m)
            for x in c1[4*g:4*g+4]: e(x)
            if g == 3: e.wait(vm=[('kv', 3)])
            if g >= 4:
                for f in late[4*(g-4):4*(g-4)+4]: f()
    else: inter(qk(0), cvtq(1))
    sm0 = softmax(0); sm1 = softmax(1)
    e(f'v_lshlrev_b32 v11, 4, v0\ns_lshl_b32 s79, s32, 13\ns_add_u32 s79, s79, {XB}\nv_add_u32 v11, s79, v11')
    inter(qk(1), sm0, start=2, per=5)
    inter(pv(0), sm1, start=0, per=5)
    e.wait(lg=[('c', 3)])
    e('s_barrier')
    e.wait(vm=[('w', 40)])
    for f in reads_o(0): f()
    c0 = cvto(0)
    inter(pv(1), c0, start=1, per=5)
    for i in range(1, 4):
        e(f's_add_u32 s79, s32, {i}\ns_and_b32 s79, s79, 3\ns_lshl_b32 s79, s79, 13\ns_add_u32 s79, s79, {XB}\nv_lshlrev_b32 v{7+i}, 4, v0\nv_add_u32 v{7+i}, s79, v{7+i}')
    e('v_lshlrev_b32 v12, 4, v0')
    for x in cvto(1): emit_item(x)
    if FU: tail_consts(e, o)
    stamp()
    def oreads(i):
        return [lambda qb=qb, t=t: e.lg(f'ds_read_b128 {vr((i-1)*64+qb*32+t*4,4,"a")}, v{7+i} offset:{qb*ODELTA+t*1024}', ('ob', i)) for t in range(8) for qb in range(2)]
    osched = {}
    r1 = oreads(1)
    osched[1] = r1[:6]; osched[2] = r1[6:11]; osched[3] = r1[11:]
    for i in (2, 3):
        rr = oreads(i)
        for q in range(4): osched[4*(i-1) + q] = rr[4*q:4*q+4]
    def store_items(r):
        A = ACC + (r & 1)*64; L = []
        for bi in range(8):
            T = A + (bi >> 1)*16 + (bi & 1)*8
            L.append(lambda T=T: e(f'v_cvt_pk_bf16_f32 v{T}, v{T}, v{T+1}\nv_cvt_pk_bf16_f32 v{T+1}, v{T+2}, v{T+3}'))
            def f(T=T, bi=bi):
                e(f'v_cvt_pk_bf16_f32 v{T+2}, v{T+4}, v{T+5}\nv_cvt_pk_bf16_f32 v{T+3}, v{T+6}, v{T+7}')
                e(f'v_permlane32_swap_b32 v{T}, v{T+2}\nv_permlane32_swap_b32 v{T+1}, v{T+3}')
                if bi == 4: e(f's_add_u32 s{76+r}, s{76+r}, 4096')
                if not o.get('nost'): e.vm(f'buffer_store_dwordx4 {vr(T,4)}, v12, s[28:31], s{76+r} offen offset:{(bi&3)*1024} {o["st"]}', ('st', r))
            L.append(f)
        return L
    fl = dict(f0=None)
    for j in range(40):
        n = 40 + j; r, i, sb = oinfo(j)
        e.wait(lg=[('f', n)] + ([('ob', i)] if (i and sb == 0 and r == 0) else []))
        trace(11, j)
        if j == 1:
            e.wait(lg=[('ow',)]); e('s_barrier')
        gaps = [[] for _ in range(8)]
        d = dma_ring(ring_at[n][0]) if n in ring_at else None
        if d:
            gaps[0] += [d[0], d[1]]; gaps[1] += [d[2]]; gaps[2] += [d[3]]; gaps[3] += [d[4]]
        if j < 39:
            gaps[1].append(lambda n=n: e.wait(vm=[('w', n + 1)]))
            for q, f in enumerate(reads_o(j + 1)): gaps[1 + q//2].append(f)
        for q, f in enumerate(osched.get(j, [])): gaps[5 + q//2].append(f)
        if r >= 1:
            it = store_items(r - 1)
            if FU:
                nsl = o.get('sp0', 8) if r == 1 else o.get('sp1', 4); per = 16 // nsl
                pos = [(q // per, {1: [5], 2: [4, 6], 4: [4, 5, 6, 7], 8: [4, 4, 5, 5, 6, 6, 7, 7]}[per][q % per]) for q in range(16)]
            elif o['spread']:
                nsl = 16 if r == 1 else 8
                pos = [((q*nsl)//16, (4 if q % 2 == 0 else 6) if nsl == 8 else 5) for q in range(16)]
            else: pos = [(0, g) for g in range(3, 8)] + [(1, g) for g in range(8)] + [(2, g) for g in range(8)]
            for q, f in enumerate(it):
                if pos[q][0] == (j & 15): gaps[pos[q][1]].append(f)
        if FU:
            def flag0():
                if fl['f0'] is None and ('st', 0) not in e.vmq:
                    fl['f0'] = 1; e.vm('buffer_store_dword v17, v14, s[28:31], s50 offen sc1', ('fl', 0))
            if j >= 16 + o.get('sp0', 8): gaps[2].append(flag0)
            if o.get('early', 1):
                if j == o.get('jp', 33): gaps[7].append(lambda: e.vm('buffer_load_dword v16, v18, s[28:31], s51 offen sc1', ('poll',)))
                if j == o.get('jc', 36): gaps[3].append(lambda: early_check(e))
        A = ACC + (r & 1)*64
        ms = []
        for tt in range(2):
            t = 2*sb + tt
            for qb in range(2):
                for nb in range(2):
                    B = vr(OP[qb]+t*4, 4) if i == 0 else vr((i-1)*64+qb*32+t*4, 4, 'a')
                    T = vr(A+(nb*2+qb)*16, 16)
                    first = (i == 0 and sb == 0 and tt == 0)
                    ms.append(mf(T, vr(192+(j&1)*16+(tt*2+nb)*4, 4, 'a'), B, '0' if first else T))
        run_gaps(ms, gaps)
    stamp()
    if FU:
        assert fl['f0'] == 1 and e.vmq[-1] == ('st', 1), e.vmq
        flag1(e, o)
    e(f'''v_add_u32 v8, s64, v12
          s_xor_b32 s79, s32, 1
          s_mul_i32 s79, s79, {RINGB}
          v_add_u32 v9, s79, v12
          s_add_u32 s3, s78, 4096
          s_bitcmp1_b32 s32, 0
          s_cbranch_scc1 L_odd''')
    e('@save fin')
    sv = (list(e.vmq), list(e.lgq))
    for par in range(2):
        if par:
            e('L_odd:'); e('@restore fin'); e.vmq, e.lgq = list(sv[0]), list(sv[1])
        for nb in range(2):
            T = ACC + (nb*2 + 1 - par)*16
            for c4 in range(4): e.lg(f'ds_write_b128 v8, {vr(T+4*c4,4)} offset:{(nb*4+c4)*1024}', ('xw',))
        e.wait(lg='*'); e('s_barrier')
        for q in range(8): e.lg(f'ds_read_b128 {vr(192+4*q,4)}, v9 offset:{q*1024}', ('xr', q//2))
        for nb in range(2):
            for G in range(2):
                T = ACC + (nb*2 + par)*16 + 8*G; X = 192 + nb*16 + 8*G
                e.wait(lg=[('xr', nb*2 + G)])
                for q in range(8): e(f'v_add_f32 v{T+q}, v{T+q}, v{X+q}')
                for q in range(4): e(f'v_cvt_pk_bf16_f32 v{T+q}, v{T+2*q}, v{T+2*q+1}')
                e(f'v_permlane32_swap_b32 v{T}, v{T+2}\nv_permlane32_swap_b32 v{T+1}, v{T+3}')
                e.vm(f'buffer_store_dwordx4 {vr(T,4)}, v12, s[28:31], {"s3" if nb else "s78"} offen offset:{par*2048+G*1024} {o["st"]}', ('st', 2))
        if par == 0: e('s_branch L_fin')
    e('L_fin:')
    if o.get('fuse'): fused_tail(e, o, stamp)
    if o['stamps']:
        e('s_waitcnt vmcnt(0)'); stamp()
        e(f's_memrealtime s[98:99]\ns_lshl_b32 s3, s2, 2\ns_add_u32 s3, s3, s32\ns_lshl_b32 s3, s3, 7\ns_add_u32 s3, s3, {STAMP_WS}\ns_waitcnt lgkmcnt(0)')
        if o.get('trace'):
            e(f's_lshl_b32 s4, s2, 2\ns_add_u32 s4, s4, s32\ns_lshl_b32 s4, s4, 9\ns_add_u32 s4, s4, {STAMP_WS+0x200000}\nv_lshlrev_b32 v2, 2, v0')
            e('buffer_store_dword v1, v2, s[28:31], s4 offen\nbuffer_store_dword v11, v2, s[28:31], s4 offen offset:256\ns_waitcnt vmcnt(0)')
        e('v_mov_b32 v1, 0\nv_cmp_eq_u32 vcc, 0, v0\ns_and_saveexec_b64 s[4:5], vcc')
        for q in range(ns[0]): e(f'v_mov_b32 v2, s{82+2*q}\nbuffer_store_dword v2, v1, s[28:31], s3 offen offset:{4*q}')
        e(f'v_mov_b32 v2, s100\nbuffer_store_dword v2, v1, s[28:31], s3 offen offset:64\nv_mov_b32 v2, s98\nbuffer_store_dword v2, v1, s[28:31], s3 offen offset:68')
    e('L_end1:\ns_endpgm')
    txt = e.finish()
    return txt, e

def k2(o):
    e = Em()
    e('s_cmp_ge_u32 s2, 256\ns_cbranch_scc1 L_end2')
    e('s_load_dwordx2 s[8:9], s[0:1], 96\ns_load_dwordx2 s[12:13], s[0:1], 80')
    if o['stamps']: e('s_memrealtime s[100:101]')
    e('v_lshrrev_b32 v1, 6, v0\nv_and_b32 v0, 63, v0\nv_readfirstlane_b32 s20, v1')
    e('s_mul_i32 s21, s2, 5\ns_add_u32 s21, s21, s20')
    e('s_lshr_b32 s22, s21, 2\ns_and_b32 s23, s21, 3')
    e('s_lshl_b32 s24, s22, 16\ns_lshl_b32 s25, s23, 11\ns_add_u32 s24, s24, s25')
    e('v_lshlrev_b32 v1, 4, v0')
    e(f's_mov_b32 s10, {0x10000000}\ns_mov_b32 s11, 0x20000\ns_mov_b32 s14, 2621440\ns_mov_b32 s15, 0x20000')
    e('s_waitcnt lgkmcnt(0)')
    for hg in range(8):
        for G in range(2): e.vm(f'buffer_load_dwordx4 {vr(16+hg*8+G*4,4)}, v1, s[8:11], s24 offen offset:{G*1024} {o["rd"]}', hg)
        if hg < 7: e('s_add_u32 s24, s24, 8192')
    e('''s_mul_i32 s26, s22, 6554
         s_lshr_b32 s26, s26, 16
         s_mul_i32 s27, s26, 10
         s_sub_u32 s27, s22, s27
         s_lshr_b32 s28, s26, 4
         s_and_b32 s26, s26, 15
         s_mul_i32 s26, s26, 163840
         s_mul_i32 s28, s28, 1280
         s_add_u32 s26, s26, s28
         s_lshl_b32 s27, s27, 7
         s_add_u32 s26, s26, s27
         s_lshr_b32 s27, s23, 1
         s_lshl_b32 s27, s27, 6
         s_add_u32 s26, s26, s27
         s_and_b32 s27, s23, 1
         s_mul_i32 s27, s27, 81920
         s_add_u32 s26, s26, s27
         v_and_b32 v2, 31, v0
         v_lshrrev_b32 v3, 5, v0
         v_mul_u32_u24 v2, 2560, v2
         v_lshl_add_u32 v2, v3, 4, v2''')
    A = 80
    for hg in range(8):
        e.wait(vm=[hg])
        for q in range(8):
            x = 16 + hg*8 + q
            if hg == 0: e(f'v_lshlrev_b32 v{A+2*q}, 16, v{x}\nv_and_b32 v{A+2*q+1}, 0xffff0000, v{x}')
            else: e(f'v_lshlrev_b32 v4, 16, v{x}\nv_and_b32 v{x}, 0xffff0000, v{x}\nv_add_f32 v{A+2*q}, v{A+2*q}, v4\nv_add_f32 v{A+2*q+1}, v{A+2*q+1}, v{x}')
    for q in range(8): e(f'v_cvt_pk_bf16_f32 v{8+q}, v{A+2*q}, v{A+2*q+1}')
    for G in range(2):
        e(f'buffer_store_dwordx4 {vr(8+4*G,4)}, v2, s[12:15], s26 offen offset:{G*32}')
    if o['stamps']:
        e('s_waitcnt vmcnt(0)')
        e(f's_memrealtime s[98:99]\ns_lshl_b32 s3, s21, 7\ns_add_u32 s3, s3, {STAMP_WS+0x100000}\ns_waitcnt lgkmcnt(0)')
        e('v_mov_b32 v1, 0\nv_cmp_eq_u32 vcc, 0, v0\ns_and_saveexec_b64 s[4:5], vcc')
        e(f'v_mov_b32 v2, s100\nbuffer_store_dword v2, v1, s[8:11], s3 offen offset:64\nv_mov_b32 v2, s98\nbuffer_store_dword v2, v1, s[8:11], s3 offen offset:68')
    e('L_end2:\ns_endpgm')
    return e.finish(), e

def header():
    L = open('cdna_kernels/' + NAME + '.s.ref').read().split('\n')
    return [l for l in L if l.startswith(';') and '@launch' not in l]
def build_text(hdr=None, **kw):
    o = dict(DEF); o.update(kw)
    t1, e1 = k1(o); t2, e2 = k2(o)
    if o.get('fuse'):
        return module((hdr or []) + ['; @launch grid=(256,1,1) block=(256,1,1) lds=163840'], [(NAME + '_kernel', t1, 512, 256, 102)]), e1
    lines = (hdr or []) + [f'; @launch kernel={NAME}_kernel grid=(256,1,1) block=(256,1,1) lds=163840',
                           f'; @launch kernel=reduce_kernel grid=(256,1,1) block=(320,1,1) lds=0']
    return module(lines, [(NAME + '_kernel', t1, 512, 256, 102), ('reduce_kernel', t2, 96, 96, 102)]), e1
if __name__ == '__main__':
    t, e1 = build_text(header())
    out = sys.argv[1] if len(sys.argv) > 1 else 'k.s'
    open(out, 'w').write(t)
    print('lines', t.count('\n'), 'nops', e1.nops, 'maxvm', e1.maxvm, 'maxlg', e1.maxlg)
```

```python
MB = 0x2000000
OOB = 0x10000000
def vr(b, n, k='v'): return f'{k}[{b}:{b+n-1}]'
def mb_clear(e):
    e(f"""s_load_dwordx4 s[36:39], s[0:1], 80
          s_lshl_b32 s44, s33, 4
          s_add_u32 s44, s44, s35
          s_lshl_b32 s49, s44, 12
          s_add_u32 s49, s49, {MB}
          s_lshl_b32 s50, s32, 7
          s_add_u32 s50, s50, s49
          s_lshl_b32 s51, s34, 9
          s_add_u32 s51, s51, s50
          s_lshl_b32 s52, s34, 2
          s_add_u32 s50, s50, s52
          v_and_b32 v16, 31, v0
          v_lshlrev_b32 v16, 2, v16
          v_mov_b32 v17, 0""")
    e.vm('buffer_store_dword v17, v16, s[28:31], s51 offen sc1', ('clr',))
def slice_loads(e, r, base, ureg=None):
    e(f's_lshl_b32 s48, s{ureg or 72+r}, 9\ns_add_u32 s48, s48, s45')
    for hg in range(8):
        e(f'buffer_load_dwordx4 {vr(base+hg*4,4)}, v19, s[28:31], s48 offen sc1')
        if hg < 7: e('s_add_u32 s48, s48, 8192')
def slice_sum(e, base, younger, ureg, ost, acc=20, out=28):
    for hg in range(8):
        e(f's_waitcnt vmcnt({7 - hg + younger})')
        for q in range(4):
            x = base + hg*4 + q
            if hg == 0: e(f'v_lshlrev_b32 v{acc+2*q}, 16, v{x}\nv_and_b32 v{acc+2*q+1}, 0xffff0000, v{x}')
            else: e(f'v_lshlrev_b32 v7, 16, v{x}\nv_and_b32 v{x}, 0xffff0000, v{x}\nv_add_f32 v{acc+2*q}, v{acc+2*q}, v7\nv_add_f32 v{acc+2*q+1}, v{acc+2*q+1}, v{x}')
    for q in range(4): e(f'v_cvt_pk_bf16_f32 v{out+q}, v{acc+2*q}, v{acc+2*q+1}')
    e(f's_add_u32 s48, s42, s{ureg}')
    e(f'buffer_store_dwordx4 {vr(out,4)}, v13, s[12:15], s48 offen {ost}')
def cons_base(e, c):
    e(f"""s_lshr_b32 s40, s{c}, 2
          s_and_b32 s41, s{c}, 3
          s_lshl_b32 s40, s40, 11
          s_lshl_b32 s41, s41, 7
          s_add_u32 s40, s40, s41
          s_mul_i32 s45, s44, 655360
          s_add_u32 s45, s45, s40
          s_mul_i32 s42, s35, 163840
          s_mul_i32 s43, s33, 1280
          s_add_u32 s42, s42, s43
          s_mul_i32 s43, s{c}, 20480
          s_add_u32 s42, s42, s43""")
def tail_consts(e, o):
    cons_base(e, 34)
    e(f"""s_mov_b32 s12, s36
          s_mov_b32 s13, s37
          s_mov_b32 s14, 2621440
          s_mov_b32 s16, s38
          s_mov_b32 s17, s39
          s_mov_b32 s18, 256
          s_lshl_b32 s53, 0x010101, s34
          s_mov_b32 s54, 0
          s_mov_b32 s55, {o.get('budget', 1024)}
          s_and_b32 s46, s32, 1
          s_lshl_b32 s47, s46, 7
          s_sub_u32 s47, s50, s47
          s_lshl_b32 s43, s44, 3
          v_mov_b32 v16, {OOB}
          v_lshlrev_b32 v14, 9, v0
          v_lshrrev_b32 v17, 2, v0
          v_cmp_eq_u32 vcc, s46, v17
          v_cndmask_b32 v15, v16, v14, vcc
          v_cmp_gt_u32 vcc, 8, v0
          v_cndmask_b32 v14, v16, v14, vcc
          v_lshlrev_b32 v18, 2, v0
          v_cmp_gt_u32 vcc, 24, v0
          v_cndmask_b32 v18, v16, v18, vcc
          v_lshrrev_b32 v20, 4, v0
          v_lshrrev_b32 v21, 1, v20
          v_and_b32 v20, 1, v20
          v_bfe_u32 v22, v0, 3, 1
          v_and_b32 v23, 7, v0
          v_lshlrev_b32 v19, 12, v21
          v_lshl_add_u32 v19, v20, 10, v19
          v_lshl_add_u32 v19, v22, 9, v19
          v_lshl_add_u32 v19, v23, 4, v19
          v_mul_u32_u24 v13, 2560, v23
          v_lshl_add_u32 v13, v21, 6, v13
          v_lshl_add_u32 v13, v20, 5, v13
          v_lshl_add_u32 v13, v22, 4, v13
          v_mov_b32 v17, 1
          v_mov_b32 v16, 0""")
def early_check(e):
    e.wait(vm=[('poll',)])
    e('v_cmp_ne_u32 vcc, 0, v16\ns_or_b32 s52, vcc_lo, s53\ns_and_b32 s52, s52, 0xff\ns_cmp_lg_u32 s52, 0xff\ns_cbranch_scc1 L_noearly')
    slice_loads(e, 0, 32)
    e('s_mov_b32 s54, 1\nL_noearly:')
def flag1(e, o):
    e("""s_cmp_eq_u32 s54, 0
         s_cbranch_scc1 L_w0
         s_waitcnt vmcnt(8)
         s_branch L_w1
         L_w0:
         s_waitcnt vmcnt(0)
         L_w1:""")
    if not o.get('noflag'): e('buffer_store_dword v17, v14, s[28:31], s50 offen offset:32 sc1')
    else: e('buffer_store_dword v17, v14, s[28:31], s50 offen offset:96 sc1')
def fused_tail(e, o, stamp):
    e.vmq = []; e.lgq = []
    ost = o.get('ost', '')
    def spin(name, need):
        e(f"""L_sp{name}:
              v_cmp_ne_u32 vcc, 0, v16
              s_or_b32 s52, vcc_lo, s53
              s_andn2_b32 s52, {need}, s52
              s_cbranch_scc0 L_ok{name}
              s_sub_u32 s55, s55, 1
              s_cbranch_scc1 L_to{name}
              buffer_load_dword v16, v18, s[28:31], s51 offen sc1
              s_waitcnt vmcnt(0)
              s_branch L_sp{name}
              L_to{name}:
              s_lshl_b32 s52, s34, 2
              s_add_u32 s52, s52, s32
              s_lshl_b32 s52, 1, s52
              v_mov_b32 v4, s52
              v_mov_b32 v5, 0
              buffer_atomic_add_x2 v[4:5], v6, s[16:19], s43 offen sc0 sc1
              s_waitcnt vmcnt(0)
              v_readfirstlane_b32 s52, v5
              s_cmp_lg_u32 s52, 8
              s_cbranch_scc1 L_drop
              s_mov_b32 s53, -1
              L_ok{name}:""")
    e('buffer_load_dword v16, v18, s[28:31], s51 offen sc1')
    e(f"""v_mov_b32 v6, {OOB}
          v_cmp_eq_u32 vcc, 0, v0
          v_cndmask_b32 v6, v6, 0, vcc
          v_mov_b32 v2, 0
          v_mov_b32 v3, 1
          s_cmp_eq_u32 s54, 0
          s_cbranch_scc1 L_t0""")
    slice_sum(e, 32, 6, 72, ost)
    e('s_waitcnt vmcnt(1)\ns_branch L_t1\nL_t0:\ns_waitcnt vmcnt(0)\nL_t1:')
    e('buffer_store_dword v17, v15, s[28:31], s47 offen offset:64 sc1')
    e('s_barrier')
    stamp()
    spin('a', '0xffff')
    e('s_cmp_lg_u32 s54, 0\ns_cbranch_scc1 L_t3')
    slice_loads(e, 0, 32); slice_sum(e, 32, 0, 72, ost)
    e('L_t3:')
    slice_loads(e, 1, 224)
    e('s_bitcmp1_b32 s32, 0\ns_cbranch_scc0 L_even')
    slice_sum(e, 224, 0, 73, ost)
    e('s_branch L_drop\nL_even:')
    spin('b', '0xffffff')
    slice_loads(e, 2, 32)
    slice_sum(e, 224, 8, 73, ost)
    slice_sum(e, 32, 1, 74, ost, acc=20, out=8)
    e('L_drop:')
    e("""s_cmp_lg_u32 s32, 1
         s_cbranch_scc1 L_done
         buffer_atomic_add_x2 v[2:3], v6, s[16:19], s43 offen sc0 sc1
         s_waitcnt vmcnt(0)
         v_readfirstlane_b32 s56, v2
         v_readfirstlane_b32 s57, v3
         s_cmp_lg_u32 s57, 7
         s_cbranch_scc1 L_done
         L_fb:
         s_cmp_eq_u32 s56, 0
         s_cbranch_scc1 L_done
         s_ff1_i32_b32 s58, s56
         s_bitset0_b32 s56, s58
         s_lshr_b32 s59, s58, 2
         s_and_b32 s58, s58, 3""")
    cons_base(e, 59)
    e("""s_mov_b32 s60, s58
         L_fb2:
         s_add_u32 s61, s60, s81
         s_sub_u32 s62, s61, 10
         s_cmp_ge_u32 s61, 10
         s_cselect_b32 s61, s62, s61
         s_lshl_b32 s61, s61, 7""")
    slice_loads(e, 0, 32, ureg=61); slice_sum(e, 32, 0, 61, ost)
    e("""s_cmp_ge_u32 s60, 8
         s_cbranch_scc1 L_fb
         s_add_u32 s60, s60, 4
         s_cmp_lt_u32 s60, 8
         s_cbranch_scc1 L_fb2
         s_lshr_b32 s60, s58, 1
         s_add_u32 s60, s60, 8
         s_branch L_fb2
         L_done:""")
```

```python
import sys, math
from em import Em
from asmlib import NAME, module
from tail import *
STAMP_WS = 0x8000000
DEF = dict(nt_wq='', nt_x='', nt_kv='', nt_wo='', st='sc1', rd='', stamps=False, kvT=(1, 9, 17, 25), stag=1, G=5, rot=True, R=6, XS=4, rotx=True, spread=True)

def mf(d, a, b, c): return f'v_mfma_f32_32x32x16_bf16 {d}, {a}, {b}, {c}'
def vr(b, n, k='v'): return f'{k}[{b}:{b+n-1}]'

def k1(o):
    e = Em(); ns = [0]
    R = o['R']; XS = o['XS']
    RINGB = R*4096; XB = 4*RINGB; KVB = XB + max(XS, 4)*8192
    assert KVB + 32768 <= 163840
    ODELTA = KVB - XB
    def stamp():
        if o['stamps']:
            e.wait(lg='*'); e(f's_memtime s[{82+2*ns[0]}:{83+2*ns[0]}]\ns_waitcnt lgkmcnt(0)'); ns[0] += 1
    def trace(reg, idx):
        if o.get('trace'):
            e.wait(lg='*'); e(f's_memtime s[96:97]\ns_waitcnt lgkmcnt(0)\nv_writelane_b32 v{reg}, s96, {idx}')
    e('s_cmp_ge_u32 s2, 256\ns_cbranch_scc1 L_end1')
    e('s_load_dwordx16 s[36:51], s[0:1], 0\ns_load_dwordx4 s[52:55], s[0:1], 64\ns_load_dwordx2 s[28:29], s[0:1], 96')
    if o['stamps']: e('s_memrealtime s[100:101]')
    e('v_lshrrev_b32 v1, 6, v0\nv_and_b32 v0, 63, v0\nv_readfirstlane_b32 s32, v1')
    e('''s_and_b32 s33, s2, 7
         s_lshr_b32 s33, s33, 2
         s_and_b32 s34, s2, 3
         s_lshl_b32 s34, s34, 1
         s_bfe_u32 s79, s2, 0x10003
         s_add_u32 s34, s34, s79
         s_lshr_b32 s35, s2, 4''')
    if o['rot'] == 2: e('s_and_b32 s81, s35, 1')
    elif o['rot'] == 3: e('s_and_b32 s81, s35, 3')
    elif o['rot']: e('s_mul_i32 s81, s35, 10\ns_lshr_b32 s81, s81, 4')
    else: e('s_mov_b32 s81, 0')
    G = o.get('G', 10)
    e(f's_mul_i32 s6, s35, {G}\ns_lshr_b32 s6, s6, 4\ns_mul_i32 s6, s6, {10//G}')
    e(f's_and_b32 s5, s35, {o.get("NC", 4)-1}')
    if o.get('stagw'): e('s_add_u32 s5, s35, s32\ns_and_b32 s5, s5, 3')
    if o['rotx']: e('s_and_b32 s7, s34, 1\ns_mul_i32 s7, s7, 5\ns_add_u32 s7, s7, s6\ns_sub_u32 s79, s7, 10\ns_cmp_ge_u32 s7, 10\ns_cselect_b32 s7, s79, s7')
    else: e('s_mov_b32 s7, s6')
    e('''v_lshrrev_b32 v16, 4, v0
         v_and_b32 v17, 15, v0
         v_lshrrev_b32 v18, 3, v0
         v_and_b32 v19, 7, v0''')
    e('''v_lshrrev_b32 v20, 2, v17
         v_xor_b32 v20, v20, v16
         v_lshlrev_b32 v20, 6, v20
         v_and_b32 v21, 3, v17
         v_lshl_add_u32 v20, v21, 4, v20
         v_lshl_add_u32 v2, v16, 13, v20
         v_add_u32 v3, 31744, v2
         v_add_u32 v4, 63488, v2
         v_add_u32 v5, 95232, v2''')
    if o.get('fakewq'): e('v_lshlrev_b32 v2, 4, v0\nv_mov_b32 v3, v2\nv_mov_b32 v4, v2\nv_mov_b32 v5, v2')
    if o.get('fakewq2'): e('v_lshlrev_b32 v2, 4, v17\nv_mul_u32_u24 v3, 8448, v16\nv_add_u32 v2, v2, v3\nv_add_u32 v3, 32768, v2\nv_add_u32 v4, 65536, v2\nv_add_u32 v5, 98304, v2')
    e('''v_lshl_add_u32 v24, v16, 8, v20
         v_xor_b32 v21, v17, v16
         v_lshlrev_b32 v21, 4, v21
         v_lshl_add_u32 v25, v16, 8, v21
         v_xor_b32 v26, 64, v25
         v_xor_b32 v27, 128, v25
         v_xor_b32 v28, 192, v25''')
    e('''s_mul_i32 s79, s32, 20480
         v_lshrrev_b32 v20, 1, v18
         v_xor_b32 v20, v20, v19
         v_lshlrev_b32 v20, 4, v20
         v_mul_u32_u24 v21, 1280, v18
         v_add_u32 v21, s79, v21
         v_add_u32 v6, v21, v20
         v_xor_b32 v20, 64, v20
         v_add_u32 v7, v21, v20
         v_add_u32 v7, 9216, v7''')
    e(f'''s_mul_i32 s64, s32, {RINGB}
         s_lshl_b32 s65, s32, 13
         s_add_u32 s65, s65, {KVB}
         s_lshl_b32 s66, s32, 11
         s_add_u32 s66, s66, {XB}
         s_lshl_b32 s67, s34, 2
         s_add_u32 s67, s67, s32''')
    e('''s_lshl_b32 s58, s67, 8
         s_add_u32 s57, s58, 5242880
         s_lshl_b32 s79, s7, 19
         s_add_u32 s56, s58, s79
         s_mul_i32 s61, s35, 81920
         s_add_u32 s60, s61, 1280
         s_lshl_b32 s79, s7, 7
         s_add_u32 s59, s61, s79
         s_lshl_b32 s62, s35, 6
         s_add_u32 s62, s62, s67
         s_lshl_b32 s62, s62, 13
         s_add_u32 s63, s62, 262144''')
    if o.get('fakewq'): e('s_mul_i32 s58, s67, 163840\ns_add_u32 s57, s58, 163840\ns_lshl_b32 s79, s7, 14\ns_add_u32 s56, s58, s79')
    e('s_waitcnt lgkmcnt(0)')
    e('s_cmp_eq_u32 s33, 0')
    for srd, pa, pb, sz in ((12, 36, 46, 1310720), (16, 38, 48, 8388608), (20, 40, 50, 8388608), (8, 42, 52, 5242880), (24, 44, 54, 5242880)):
        e(f's_cselect_b32 s{srd}, s{pa}, s{pb}\ns_cselect_b32 s{srd+1}, s{pa+1}, s{pb+1}\ns_mov_b32 s{srd+2}, {sz}\ns_mov_b32 s{srd+3}, 0x20000')
    e(f's_mov_b32 s30, {0x10000000}\ns_mov_b32 s31, 0x20000')
    stamp()
    def dma_wq(n):
        L = [lambda: e(f's_add_u32 m0, s64, {(n%R)*4096}')]
        for i in range(4):
            L.append(lambda i=i: e.vm(f'buffer_load_dwordx4 v{2+i}, s[8:11], s56 offen offset:{i*1024} {o["nt_wq"]} lds', ('w', n)))
        def adv():
            e('s_add_u32 s56, s56, %d' % (4096 if o.get('fakewq') else 131072))
            if n % 4 == 3: e('s_cmp_eq_u32 s56, s57\ns_cselect_b32 s56, s58, s56')
        L.append(adv); return L
    def oinfo(j):
        r = j >> 4; sb = j & 3
        i = ((j & 15) >> 2) if r < 2 else 2*((j-32) >> 2)
        return r, i, sb
    def dma_wo(j):
        n = 40 + j; r, i, sb = oinfo(j)
        def pre():
            if sb == 0: e(f's_add_u32 s75, s{68+i}, s{72+r}')
            else: e('s_add_u32 s75, s75, 40960')
            e(f's_add_u32 m0, s64, {(n%R)*4096}')
        L = [pre]
        for q in range(4):
            L.append(lambda q=q: e.vm(f'buffer_load_dwordx4 v{2+q}, s[24:27], s75 offen offset:{q*1024} {o["nt_wo"]} lds', ('w', n)))
        L.append(lambda: None); return L
    def dma_ring(n):
        if n < 40: return dma_wq(n)
        if n < 80: return dma_wo(n-40)
        return None
    def dma_x(s):
        def f():
            e(f's_add_u32 m0, s66, {(s%XS)*8192}')
            for i in range(2): e.vm(f'buffer_load_dwordx4 v{6+i}, s[12:15], s59 offen offset:{i*1024} {o["nt_x"]} lds', ('x', s))
            e('s_add_u32 s59, s59, 128\ns_cmp_eq_u32 s59, s60\ns_cselect_b32 s59, s61, s59')
        return f
    def dma_kv(j):
        isv = j >= 2; srd = 's[20:23]' if isv else 's[16:19]'; so = 62 + (j & 1)
        def half(hh):
            def f():
                if hh == 0:
                    e.wait(lg=[('c', j-1)]); e('s_mov_b32 m0, s65'); sr = f's{so}'
                else:
                    e(f's_add_u32 s79, s{so}, 4096\ns_add_u32 m0, s65, 4096'); sr = 's79'
                for i in range(o.get('kvn', 4) if not o.get('skipkv') else 0):
                    e.vm(f'buffer_load_dwordx4 v{24 if isv else 25+i}, {srd}, {sr} offen offset:{i*1024} {o["nt_kv"]} lds', ('kv', j))
            return f
        return [half(0), half(1)]
    P0 = o.get('P0', 2)
    dma_x(0)()
    for n in range(P0):
        for f in dma_wq(n): f()
    FU = o.get('fuse')
    if FU: mb_clear(e)
    ring_at = {}; nxt = P0
    for t in range(80):
        k = 0
        while nxt <= t + R and nxt < 80 and k < o.get('ramp', 3):
            ring_at.setdefault(t, []).append(nxt); nxt += 1; k += 1
    x_at = {}
    x_at.setdefault(o.get('x1T', 0), []).append(1)
    if o.get('xjit'):
        for s_ in range(2, 10): x_at.setdefault(4*(s_ - 2) + 3, []).append(s_)
    else:
        for s_ in range(2, XS): x_at.setdefault(3, []).append(s_)
        for s_ in range(XS, 10): x_at.setdefault(4*(s_ - XS) + 3, []).append(s_)
    e('''v_lshrrev_b32 v20, 5, v0
         v_bfe_u32 v21, v0, 4, 1
         v_bfe_u32 v22, v0, 2, 2
         v_and_b32 v23, 3, v0''')
    e('''v_lshl_add_u32 v8, v20, 3, v22
         v_lshlrev_b32 v8, 8, v8
         v_lshl_add_u32 v8, v22, 6, v8
         v_lshl_add_u32 v8, v21, 5, v8
         v_and_b32 v16, 1, v23
         v_lshrrev_b32 v17, 1, v23
         v_lshl_add_u32 v16, v16, 1, v17
         v_lshl_add_u32 v8, v16, 3, v8
         v_add_u32 v8, s64, v8
         v_xor_b32 v9, 64, v8
         v_xor_b32 v10, 128, v8
         v_xor_b32 v11, 192, v8''')
    e('''v_lshl_add_u32 v29, v20, 2, v22
         v_lshlrev_b32 v29, 8, v29
         v_lshl_add_u32 v29, v22, 6, v29
         v_lshl_add_u32 v29, v21, 5, v29
         v_lshl_add_u32 v29, v23, 3, v29
         v_add_u32 v29, s65, v29''')
    e('''v_lshl_add_u32 v31, v20, 2, v22
         v_lshlrev_b32 v31, 7, v31
         v_lshrrev_b32 v16, 1, v22
         v_lshl_add_u32 v31, v16, 6, v31
         v_lshl_add_u32 v31, v21, 5, v31
         v_lshl_add_u32 v31, v23, 3, v31
         v_add_u32 v31, s64, v31''')
    e(f'''v_and_b32 v16, 31, v0
         v_bfe_u32 v17, v0, 1, 3
         v_xor_b32 v17, v17, v20
         v_lshlrev_b32 v17, 4, v17
         v_lshl_add_u32 v12, v16, 7, v17
         v_add_u32 v12, {XB}, v12
         v_xor_b32 v13, 32, v12
         v_xor_b32 v14, 64, v12
         v_xor_b32 v15, 96, v12
         v_and_b32 v17, 15, v0
         v_xor_b32 v17, v17, v20
         v_lshlrev_b32 v17, 4, v17
         v_lshl_add_u32 v30, v16, 8, v17
         v_add_u32 v30, s65, v30''')
    e('s_lshl_b32 s79, s34, 2')
    for i in range(4):
        e(f's_add_u32 s3, s32, {i}\ns_and_b32 s3, s3, 3\ns_add_u32 s3, s3, s79\ns_mul_i32 s{68+i}, s3, 163840')
    e('s_lshr_b32 s3, s32, 1\ns_add_u32 s74, s3, 8\ns_add_u32 s73, s32, 4\ns_mov_b32 s72, s32')
    e('s_lshl_b32 s4, s33, 4\ns_add_u32 s4, s4, s35\ns_mul_i32 s4, s4, 10')
    for r in range(3):
        e(f'''s_add_u32 s{72+r}, s{72+r}, s81
              s_sub_u32 s3, s{72+r}, 10
              s_cmp_ge_u32 s{72+r}, 10
              s_cselect_b32 s{72+r}, s3, s{72+r}
              s_add_u32 s3, s4, s{72+r}
              s_lshl_b32 s3, s3, 3
              s_add_u32 s3, s3, s34
              s_lshl_b32 s{76+r}, s3, 13
              s_lshl_b32 s{72+r}, s{72+r}, 7''')
    c = (128 ** -0.5) * math.log2(math.e)
    import struct
    e(f's_mov_b32 s80, {hex(struct.unpack("<I", struct.pack("<f", c))[0])}')
    AF, BF, ACC = 96, 80, 128
    def reads_q(t):
        b = t & 1; L = []
        s = t >> 2; tt = t & 3
        for qb in range(2):
            L.append(lambda qb=qb: e.lg(f'ds_read_b128 {vr(BF+b*8+qb*4,4)}, v{12+tt} offset:{(s%XS)*8192+qb*4096}', ('f', t)))
        for db in range(4):
            for u in range(2):
                L.append(lambda db=db, u=u: e.lg(f'ds_read_b64_tr_b16 {vr(AF+b*16+db*4+2*u,2)}, v{8+db} offset:{(t%R)*4096+u*1024}', ('f', t)))
        return L
    def copy_items(j):
        L = []
        if j < 2:
            for t in range(8):
                def f(t=t):
                    if t: e(f'v_xor_b32 v{16+t}, {t*32}, v30')
                    e.lg(f'ds_read_b128 {vr(j*32+t*4,4,"a")}, v{16+t if t else 30}', ('c', j))
                L.append(f)
        else:
            for db in range(4):
                for t in range(2):
                    for u in range(2):
                        def f(db=db, t=t, u=u):
                            if db and t == 0 and u == 0: e(f'v_xor_b32 v{16+db}, {db*64}, v29')
                            e.lg(f'ds_read_b64_tr_b16 {vr(j*32+(db*2+t)*4+2*u,2,"a")}, v{16+db if db else 29} offset:{(16*t+8*u)*256}', ('c', j))
                        L.append(f)
        return L
    def reads_o(j):
        n = 40 + j; L = []
        for tt in range(2):
            for nb in range(2):
                for u in range(2):
                    L.append(lambda tt=tt, nb=nb, u=u: e.lg(f'ds_read_b64_tr_b16 {vr(192+(j&1)*16+(tt*2+nb)*4+2*u,2,"a")}, v{6+nb} offset:{(n%R)*4096+(16*tt+8*u)*128}', ('f', n)))
        return L
    def run_gaps(mfmas, gaps):
        for g, m in enumerate(mfmas):
            e(m)
            for f in gaps[g]: f()
    def wo_voff():
        e('''v_lshrrev_b32 v2, 3, v0
             v_bfe_u32 v3, v0, 4, 1
             v_lshlrev_b32 v3, 2, v3
             v_and_b32 v4, 7, v0
             v_xor_b32 v3, v3, v4
             v_mul_u32_u24 v2, 1280, v2
             v_lshl_add_u32 v2, v3, 4, v2
             v_add_u32 v3, 9216, v2
             v_add_u32 v4, 18432, v2
             v_add_u32 v5, 27648, v2''')
    e.wait(vm=[('x', 0), ('w', 0)]); e('s_barrier')
    for f in reads_q(0): f()
    kvT = o['kvT']
    copy_sched = {}; late = []; stag = o.get('stag'); NC = o.get('NC', 4); CS = o.get('CS', 2)
    kv_at = {}; cp_at = {}
    lab = [0]
    def ghost(c, fs):
        def f():
            lab[0] += 1; sv = (list(e.vmq), list(e.lgq))
            e(f's_cmp_lg_u32 s5, {c}\ns_cbranch_scc1 Lg{lab[0]}')
            e.lgq = []
            if len(fs) > 5: e('s_waitcnt lgkmcnt(7)')
            for g in fs: g()
            e(f'Lg{lab[0]}:'); e.vmq, e.lgq = sv
        return f
    for j in range(4):
        it = copy_items(j)
        if stag:
            for c in range(NC):
                T = kvT[j] + CS*c
                kv_at.setdefault(T, []).append(ghost(c, dma_kv(j)))
                if j < 3:
                    h = len(it)//2
                    cp_at.setdefault(T + R, []).append(ghost(c, it[:h])); cp_at.setdefault(T + R + 1, []).append(ghost(c, it[h:]))
                else: assert T <= 39 - R - 1
            if j == 3: late = it
            continue
        if kvT[j] + R + (len(it)-1)//4 > 39:
            assert j == 3; late = it; continue
        for q in range(0, len(it), 4): copy_sched.setdefault(kvT[j] + R + q//4, []).extend([(j, f) for f in it[q:q+4]])
    for t in range(40):
        b = t & 1
        e.wait(lg=[('f', t)])
        trace(1, t)
        gaps = [[] for _ in range(8)]
        if t % 4 == 3 and t < 39:
            e.wait(vm=[('x', (t >> 2) + 1)])
            if not o.get('nobar'): e('s_barrier')
        for k, n in enumerate(ring_at.get(t, [])):
            d = dma_ring(n)
            if n == 40: d[0] = (lambda f=d[0]: (wo_voff(), f()))
            if k == 0:
                gaps[0] += [d[0], d[1]]; gaps[1] += [d[2]]; gaps[2] += [d[3]]; gaps[3] += [d[4], d[5]]
            else: gaps[5 + k] += d
        if t < 39:
            rd = reads_q(t + 1)
            gaps[1].append(lambda t=t: e.wait(vm=[('w', t + 1)]))
            for i, f in enumerate(rd): gaps[1 + i//2].append(f)
        for s_ in x_at.get(t, []): gaps[4].append(dma_x(s_))
        if stag:
            gaps[6] += cp_at.get(t, []); gaps[7] += kv_at.get(t, [])
        elif t in kvT:
            kv = dma_kv(kvT.index(t)); gaps[5].append(kv[0]); gaps[6].append(kv[1])
        if t in copy_sched:
            j0 = copy_sched[t][0][0]
            gaps[6].append(lambda j0=j0: e.wait(vm=[('kv', j0)]))
            for i, (j, f) in enumerate(copy_sched[t]): gaps[6 + i//2].append(f)
        order = [(db, qb) for db in range(4) for qb in range(2)] if t < 39 else [(db, qb) for qb in range(2) for db in range(4)]
        ms = [mf(vr(ACC+qb*64+db*16,16), vr(AF+b*16+db*4,4), vr(BF+b*8+qb*4,4), vr(ACC+qb*64+db*16,16) if t else '0') for db, qb in order]
        if t == 39:
            pass
        run_gaps(ms, gaps)
    stamp()
    QP = [32, 64]; S = [96, 16]; P = [112, 120]; OA = [128, 192]; OP = [64, 96]
    e('v_mov_b32 v6, v31\nv_xor_b32 v7, 64, v31')
    def cvtq(qb):
        return [f'v_cvt_pk_bf16_f32 v{QP[qb]+i}, v{ACC+qb*64+2*i}, v{ACC+qb*64+2*i+1}' for i in range(32)]
    def qk(qb):
        return [mf(vr(S[qb],16), vr(qb*32+t*4,4,'a'), vr(QP[qb]+t*4,4), vr(S[qb],16) if t else '0') for t in range(8)]
    def softmax(qb):
        s = S[qb]; m, t2, l = (8, 9, 10) if qb == 0 else (12, 13, 14)
        L = [f'v_max3_f32 v{m}, v{s}, v{s+1}, v{s+2}', f'v_max3_f32 v{t2}, v{s+3}, v{s+4}, v{s+5}']
        L += [f'v_max3_f32 v{m}, v{m}, v{s+6}, v{s+7}', f'v_max3_f32 v{t2}, v{t2}, v{s+8}, v{s+9}']
        L += [f'v_max3_f32 v{m}, v{m}, v{s+10}, v{s+11}', f'v_max3_f32 v{t2}, v{t2}, v{s+12}, v{s+13}']
        L += [f'v_max3_f32 v{m}, v{m}, v{s+14}, v{s+15}', f'v_max_f32 v{m}, v{m}, v{t2}', f'v_mov_b32 v{t2}, v{m}']
        L += [f'v_permlane32_swap_b32 v{m}, v{t2}', f'v_max_f32 v{m}, v{m}, v{t2}', f'v_mul_f32 v{m}, s80, v{m}']
        for i in range(16): L.append(f'v_fma_f32 v{s+i}, v{s+i}, s80, -v{m}')
        for i in range(16): L.append(f'v_exp_f32 v{s+i}, v{s+i}')
        L += [f'v_add_f32 v{l}, v{s}, v{s+1}', f'v_add_f32 v{t2}, v{s+2}, v{s+3}']
        for i in range(4, 16, 2): L += [f'v_add_f32 v{l}, v{l}, v{s+i}', f'v_add_f32 v{t2}, v{t2}, v{s+i+1}']
        L += [f'v_add_f32 v{l}, v{l}, v{t2}', f'v_mov_b32 v{t2}, v{l}', f'v_permlane32_swap_b32 v{l}, v{t2}', f'v_add_f32 v{l}, v{l}, v{t2}', f'v_rcp_f32 v{l}, v{l}']
        for i in range(16): L.append(f'v_mul_f32 v{s+i}, v{s+i}, v{l}')
        for i in range(8): L.append(f'v_cvt_pk_bf16_f32 v{P[qb]+i}, v{s+2*i}, v{s+2*i+1}')
        return L
    def pv(qb):
        return [mf(vr(OA[qb]+db*16,16), vr(64+qb*32+(db*2+t)*4,4,'a'), vr(P[qb]+t*4,4), vr(OA[qb]+db*16,16) if t else '0') for t in range(2) for db in range(4)]
    def cvto(qb):
        L = []
        for t in range(8):
            for i in range(4): L.append(f'v_cvt_pk_bf16_f32 v{OP[qb]+t*4+i}, v{OA[qb]+t*8+2*i}, v{OA[qb]+t*8+2*i+1}')
            L.append(('w', qb, t))
        return L
    def emit_item(x):
        if isinstance(x, tuple):
            _, qb, t = x
            e.lg(f'ds_write_b128 v11, {vr(OP[qb]+t*4,4)} offset:{qb*ODELTA+t*1024}', ('ow',))
        else: e(x)
    def inter(ms, fill, start=0, per=None):
        fill = list(fill); n = len(ms) - start
        per = per or -(-len(fill) // n)
        for g, m in enumerate(ms):
            e(m)
            if g >= start:
                for x in fill[:per]: emit_item(x)
                fill = fill[per:]
        for x in fill: emit_item(x)
    e.wait(lg='*')
    for x in cvtq(0): e(x)
    if late:
        c1 = cvtq(1); ms = qk(0)
        for g, m in enumerate(ms):
            e(m)
            for x in c1[4*g:4*g+4]: e(x)
            if g == 3: e.wait(vm=[('kv', 3)])
            if g >= 4:
                for f in late[4*(g-4):4*(g-4)+4]: f()
    else: inter(qk(0), cvtq(1))
    sm0 = softmax(0); sm1 = softmax(1)
    e(f'v_lshlrev_b32 v11, 4, v0\ns_lshl_b32 s79, s32, 13\ns_add_u32 s79, s79, {XB}\nv_add_u32 v11, s79, v11')
    inter(qk(1), sm0, start=2, per=5)
    inter(pv(0), sm1, start=0, per=5)
    e.wait(lg=[('c', 3)])
    e('s_barrier')
    e.wait(vm=[('w', 40)])
    for f in reads_o(0): f()
    c0 = cvto(0)
    inter(pv(1), c0, start=1, per=5)
    for i in range(1, 4):
        e(f's_add_u32 s79, s32, {i}\ns_and_b32 s79, s79, 3\ns_lshl_b32 s79, s79, 13\ns_add_u32 s79, s79, {XB}\nv_lshlrev_b32 v{7+i}, 4, v0\nv_add_u32 v{7+i}, s79, v{7+i}')
    e('v_lshlrev_b32 v12, 4, v0')
    for x in cvto(1): emit_item(x)
    if FU: tail_consts(e, o)
    stamp()
    def oreads(i):
        return [lambda qb=qb, t=t: e.lg(f'ds_read_b128 {vr((i-1)*64+qb*32+t*4,4,"a")}, v{7+i} offset:{qb*ODELTA+t*1024}', ('ob', i)) for t in range(8) for qb in range(2)]
    osched = {}
    r1 = oreads(1)
    osched[1] = r1[:6]; osched[2] = r1[6:11]; osched[3] = r1[11:]
    for i in (2, 3):
        rr = oreads(i)
        for q in range(4): osched[4*(i-1) + q] = rr[4*q:4*q+4]
    def store_items(r):
        A = ACC + (r & 1)*64; L = []
        for bi in range(8):
            T = A + (bi >> 1)*16 + (bi & 1)*8
            L.append(lambda T=T: e(f'v_cvt_pk_bf16_f32 v{T}, v{T}, v{T+1}\nv_cvt_pk_bf16_f32 v{T+1}, v{T+2}, v{T+3}'))
            def f(T=T, bi=bi):
                e(f'v_cvt_pk_bf16_f32 v{T+2}, v{T+4}, v{T+5}\nv_cvt_pk_bf16_f32 v{T+3}, v{T+6}, v{T+7}')
                e(f'v_permlane32_swap_b32 v{T}, v{T+2}\nv_permlane32_swap_b32 v{T+1}, v{T+3}')
                if bi == 4: e(f's_add_u32 s{76+r}, s{76+r}, 4096')
                if not o.get('nost'): e.vm(f'buffer_store_dwordx4 {vr(T,4)}, v12, s[28:31], s{76+r} offen offset:{(bi&3)*1024} {o["st"]}', ('st', r))
            L.append(f)
        return L
    fl = dict(f0=None)
    for j in range(40):
        n = 40 + j; r, i, sb = oinfo(j)
        e.wait(lg=[('f', n)] + ([('ob', i)] if (i and sb == 0 and r == 0) else []))
        trace(11, j)
        if j == 1:
            e.wait(lg=[('ow',)]); e('s_barrier')
        gaps = [[] for _ in range(8)]
        d = dma_ring(ring_at[n][0]) if n in ring_at else None
        if d:
            gaps[0] += [d[0], d[1]]; gaps[1] += [d[2]]; gaps[2] += [d[3]]; gaps[3] += [d[4]]
        if j < 39:
            gaps[1].append(lambda n=n: e.wait(vm=[('w', n + 1)]))
            for q, f in enumerate(reads_o(j + 1)): gaps[1 + q//2].append(f)
        for q, f in enumerate(osched.get(j, [])): gaps[5 + q//2].append(f)
        if r >= 1:
            it = store_items(r - 1)
            if FU:
                nsl = o.get('sp0', 8) if r == 1 else o.get('sp1', 4); per = 16 // nsl
                pos = [(q // per, {1: [5], 2: [4, 6], 4: [4, 5, 6, 7], 8: [4, 4, 5, 5, 6, 6, 7, 7]}[per][q % per]) for q in range(16)]
            elif o['spread']:
                nsl = 16 if r == 1 else 8
                pos = [((q*nsl)//16, (4 if q % 2 == 0 else 6) if nsl == 8 else 5) for q in range(16)]
            else: pos = [(0, g) for g in range(3, 8)] + [(1, g) for g in range(8)] + [(2, g) for g in range(8)]
            for q, f in enumerate(it):
                if pos[q][0] == (j & 15): gaps[pos[q][1]].append(f)
        if FU:
            def flag0():
                if fl['f0'] is None and ('st', 0) not in e.vmq:
                    fl['f0'] = 1; e.vm('buffer_store_dword v17, v14, s[28:31], s50 offen sc1', ('fl', 0))
            if j >= 16 + o.get('sp0', 8): gaps[2].append(flag0)
            if o.get('early', 1):
                if j == o.get('jp', 33): gaps[7].append(lambda: e.vm('buffer_load_dword v16, v18, s[28:31], s51 offen sc1', ('poll',)))
                if j == o.get('jc', 36): gaps[3].append(lambda: early_check(e))
        A = ACC + (r & 1)*64
        ms = []
        for tt in range(2):
            t = 2*sb + tt
            for qb in range(2):
                for nb in range(2):
                    B = vr(OP[qb]+t*4, 4) if i == 0 else vr((i-1)*64+qb*32+t*4, 4, 'a')
                    T = vr(A+(nb*2+qb)*16, 16)
                    first = (i == 0 and sb == 0 and tt == 0)
                    ms.append(mf(T, vr(192+(j&1)*16+(tt*2+nb)*4, 4, 'a'), B, '0' if first else T))
        run_gaps(ms, gaps)
    stamp()
    if FU:
        assert fl['f0'] == 1 and (not e.vmq or e.vmq[-1] == ('st', 1)), e.vmq
        flag1(e, o)
    e(f'''v_add_u32 v8, s64, v12
          s_xor_b32 s79, s32, 1
          s_mul_i32 s79, s79, {RINGB}
          v_add_u32 v9, s79, v12
          s_add_u32 s3, s78, 4096
          s_bitcmp1_b32 s32, 0
          s_cbranch_scc1 L_odd''')
    e('@save fin')
    sv = (list(e.vmq), list(e.lgq))
    for par in range(2):
        if par:
            e('L_odd:'); e('@restore fin'); e.vmq, e.lgq = list(sv[0]), list(sv[1])
        for nb in range(2):
            T = ACC + (nb*2 + 1 - par)*16
            for c4 in range(4): e.lg(f'ds_write_b128 v8, {vr(T+4*c4,4)} offset:{(nb*4+c4)*1024}', ('xw',))
        e.wait(lg='*'); e('s_barrier')
        for q in range(8): e.lg(f'ds_read_b128 {vr(192+4*q,4)}, v9 offset:{q*1024}', ('xr', q//2))
        for nb in range(2):
            for G in range(2):
                T = ACC + (nb*2 + par)*16 + 8*G; X = 192 + nb*16 + 8*G
                e.wait(lg=[('xr', nb*2 + G)])
                for q in range(8): e(f'v_add_f32 v{T+q}, v{T+q}, v{X+q}')
                for q in range(4): e(f'v_cvt_pk_bf16_f32 v{T+q}, v{T+2*q}, v{T+2*q+1}')
                e(f'v_permlane32_swap_b32 v{T}, v{T+2}\nv_permlane32_swap_b32 v{T+1}, v{T+3}')
                e.vm(f'buffer_store_dwordx4 {vr(T,4)}, v12, s[28:31], {"s3" if nb else "s78"} offen offset:{par*2048+G*1024} {o["st"]}', ('st', 2))
        if par == 0: e('s_branch L_fin')
    e('L_fin:')
    if o.get('fuse'): fused_tail(e, o, stamp)
    if o['stamps']:
        e('s_waitcnt vmcnt(0)'); stamp()
        e(f's_memrealtime s[98:99]\ns_lshl_b32 s3, s2, 2\ns_add_u32 s3, s3, s32\ns_lshl_b32 s3, s3, 7\ns_add_u32 s3, s3, {STAMP_WS}\ns_waitcnt lgkmcnt(0)')
        if o.get('trace'):
            e(f's_lshl_b32 s4, s2, 2\ns_add_u32 s4, s4, s32\ns_lshl_b32 s4, s4, 9\ns_add_u32 s4, s4, {STAMP_WS+0x200000}\nv_lshlrev_b32 v2, 2, v0')
            e('buffer_store_dword v1, v2, s[28:31], s4 offen\nbuffer_store_dword v11, v2, s[28:31], s4 offen offset:256\ns_waitcnt vmcnt(0)')
        e('v_mov_b32 v1, 0\nv_cmp_eq_u32 vcc, 0, v0\ns_and_saveexec_b64 s[4:5], vcc')
        for q in range(ns[0]): e(f'v_mov_b32 v2, s{82+2*q}\nbuffer_store_dword v2, v1, s[28:31], s3 offen offset:{4*q}')
        e(f'v_mov_b32 v2, s100\nbuffer_store_dword v2, v1, s[28:31], s3 offen offset:64\nv_mov_b32 v2, s98\nbuffer_store_dword v2, v1, s[28:31], s3 offen offset:68')
    e('L_end1:\ns_endpgm')
    txt = e.finish()
    return txt, e

def k2(o):
    e = Em()
    e('s_cmp_ge_u32 s2, 256\ns_cbranch_scc1 L_end2')
    e('s_load_dwordx2 s[8:9], s[0:1], 96\ns_load_dwordx2 s[12:13], s[0:1], 80')
    if o['stamps']: e('s_memrealtime s[100:101]')
    e('v_lshrrev_b32 v1, 6, v0\nv_and_b32 v0, 63, v0\nv_readfirstlane_b32 s20, v1')
    e('s_mul_i32 s21, s2, 5\ns_add_u32 s21, s21, s20')
    e('s_lshr_b32 s22, s21, 2\ns_and_b32 s23, s21, 3')
    e('s_lshl_b32 s24, s22, 16\ns_lshl_b32 s25, s23, 11\ns_add_u32 s24, s24, s25')
    e('v_lshlrev_b32 v1, 4, v0')
    e(f's_mov_b32 s10, {0x10000000}\ns_mov_b32 s11, 0x20000\ns_mov_b32 s14, 2621440\ns_mov_b32 s15, 0x20000')
    e('s_waitcnt lgkmcnt(0)')
    for hg in range(8):
        for G in range(2): e.vm(f'buffer_load_dwordx4 {vr(16+hg*8+G*4,4)}, v1, s[8:11], s24 offen offset:{G*1024} {o["rd"]}', hg)
        if hg < 7: e('s_add_u32 s24, s24, 8192')
    e('''s_mul_i32 s26, s22, 6554
         s_lshr_b32 s26, s26, 16
         s_mul_i32 s27, s26, 10
         s_sub_u32 s27, s22, s27
         s_lshr_b32 s28, s26, 4
         s_and_b32 s26, s26, 15
         s_mul_i32 s26, s26, 163840
         s_mul_i32 s28, s28, 1280
         s_add_u32 s26, s26, s28
         s_lshl_b32 s27, s27, 7
         s_add_u32 s26, s26, s27
         s_lshr_b32 s27, s23, 1
         s_lshl_b32 s27, s27, 6
         s_add_u32 s26, s26, s27
         s_and_b32 s27, s23, 1
         s_mul_i32 s27, s27, 81920
         s_add_u32 s26, s26, s27
         v_and_b32 v2, 31, v0
         v_lshrrev_b32 v3, 5, v0
         v_mul_u32_u24 v2, 2560, v2
         v_lshl_add_u32 v2, v3, 4, v2''')
    A = 80
    for hg in range(8):
        e.wait(vm=[hg])
        for q in range(8):
            x = 16 + hg*8 + q
            if hg == 0: e(f'v_lshlrev_b32 v{A+2*q}, 16, v{x}\nv_and_b32 v{A+2*q+1}, 0xffff0000, v{x}')
            else: e(f'v_lshlrev_b32 v4, 16, v{x}\nv_and_b32 v{x}, 0xffff0000, v{x}\nv_add_f32 v{A+2*q}, v{A+2*q}, v4\nv_add_f32 v{A+2*q+1}, v{A+2*q+1}, v{x}')
    for q in range(8): e(f'v_cvt_pk_bf16_f32 v{8+q}, v{A+2*q}, v{A+2*q+1}')
    for G in range(2):
        e(f'buffer_store_dwordx4 {vr(8+4*G,4)}, v2, s[12:15], s26 offen offset:{G*32}')
    if o['stamps']:
        e('s_waitcnt vmcnt(0)')
        e(f's_memrealtime s[98:99]\ns_lshl_b32 s3, s21, 7\ns_add_u32 s3, s3, {STAMP_WS+0x100000}\ns_waitcnt lgkmcnt(0)')
        e('v_mov_b32 v1, 0\nv_cmp_eq_u32 vcc, 0, v0\ns_and_saveexec_b64 s[4:5], vcc')
        e(f'v_mov_b32 v2, s100\nbuffer_store_dword v2, v1, s[8:11], s3 offen offset:64\nv_mov_b32 v2, s98\nbuffer_store_dword v2, v1, s[8:11], s3 offen offset:68')
    e('L_end2:\ns_endpgm')
    return e.finish(), e

def header():
    L = open('cdna_kernels/' + NAME + '.s.ref').read().split('\n')
    return [l for l in L if l.startswith(';') and '@launch' not in l]
def build_text(hdr=None, **kw):
    o = dict(DEF); o.update(kw)
    t1, e1 = k1(o); t2, e2 = k2(o)
    if o.get('fuse'):
        return module((hdr or []) + ['; @launch grid=(256,1,1) block=(256,1,1) lds=163840'], [(NAME + '_kernel', t1, 512, 256, 102)]), e1
    lines = (hdr or []) + [f'; @launch kernel={NAME}_kernel grid=(256,1,1) block=(256,1,1) lds=163840',
                           f'; @launch kernel=reduce_kernel grid=(256,1,1) block=(320,1,1) lds=0']
    return module(lines, [(NAME + '_kernel', t1, 512, 256, 102), ('reduce_kernel', t2, 96, 96, 102)]), e1
if __name__ == '__main__':
    t, e1 = build_text(header())
    out = sys.argv[1] if len(sys.argv) > 1 else 'k.s'
    open(out, 'w').write(t)
    print('lines', t.count('\n'), 'nops', e1.nops, 'maxvm', e1.maxvm, 'maxlg', e1.maxlg)
```

```python
import sys, math
from em import Em
from asmlib import NAME, module
from tail import *
STAMP_WS = 0x8000000
DEF = dict(nt_wq='', nt_x='', nt_kv='', nt_wo='', st='sc1', rd='', stamps=False, kvT=(1, 9, 17, 25), stag=1, G=5, rot=True, R=6, XS=4, rotx=True, spread=True)

def mf(d, a, b, c): return f'v_mfma_f32_32x32x16_bf16 {d}, {a}, {b}, {c}'
def vr(b, n, k='v'): return f'{k}[{b}:{b+n-1}]'

def k1(o):
    e = Em(); ns = [0]
    R = o['R']; XS = o['XS']
    RINGB = R*4096; XB = 4*RINGB; KVB = XB + max(XS, 4)*8192
    assert KVB + 32768 <= 163840
    ODELTA = KVB - XB
    def stamp():
        if o['stamps']:
            e.wait(lg='*'); e(f's_memtime s[{82+2*ns[0]}:{83+2*ns[0]}]\ns_waitcnt lgkmcnt(0)'); ns[0] += 1
    def trace(reg, idx):
        if o.get('trace'):
            e.wait(lg='*'); e(f's_memtime s[96:97]\ns_waitcnt lgkmcnt(0)\nv_writelane_b32 v{reg}, s96, {idx}')
    e('s_cmp_ge_u32 s2, 256\ns_cbranch_scc1 L_end1')
    e('s_load_dwordx16 s[36:51], s[0:1], 0\ns_load_dwordx4 s[52:55], s[0:1], 64\ns_load_dwordx2 s[28:29], s[0:1], 96')
    if o['stamps']: e('s_memrealtime s[100:101]')
    e('v_lshrrev_b32 v1, 6, v0\nv_and_b32 v0, 63, v0\nv_readfirstlane_b32 s32, v1')
    def code_pf():
        st = o['cpf']
        e(f'''s_getpc_b64 s[90:91]
              L_pc:
              s_sub_u32 s90, s90, L_pc-{NAME}_kernel
              s_subb_u32 s91, s91, 0
              s_lshl_b32 s92, s32, 6
              v_add_u32 v70, s92, v0
              v_mul_u32_u24 v70, {st}, v70''')
        for q in range(-(-(40960 if o["stamps"] else 32768) // (256*st))):
            e(f'''v_add_u32 v71, {q*256*st}, v70
                  v_min_u32 v71, L_end1-{NAME}_kernel, v71
                  v_mov_b32 v{67+8*q}, s91
                  v_add_co_u32 v{66+8*q}, vcc, s90, v71
                  v_addc_co_u32 v{67+8*q}, vcc, 0, v{67+8*q}, vcc''')
            e.vm(f'global_load_dword v{68+q}, v[{66+8*q}:{67+8*q}], off', ('cpf',))
    if o.get('cpf') and o.get('cpf0') == 2: code_pf()
    e('''s_and_b32 s33, s2, 7
         s_lshr_b32 s33, s33, 2
         s_and_b32 s34, s2, 3
         s_lshl_b32 s34, s34, 1
         s_bfe_u32 s79, s2, 0x10003
         s_add_u32 s34, s34, s79
         s_lshr_b32 s35, s2, 4''')
    if o['rot'] == 2: e('s_and_b32 s81, s35, 1')
    elif o['rot'] == 3: e('s_and_b32 s81, s35, 3')
    elif o['rot']: e('s_mul_i32 s81, s35, 10\ns_lshr_b32 s81, s81, 4')
    else: e('s_mov_b32 s81, 0')
    G = o.get('G', 10)
    e(f's_mul_i32 s6, s35, {G}\ns_lshr_b32 s6, s6, 4\ns_mul_i32 s6, s6, {10//G}')
    e(f's_and_b32 s5, s35, {o.get("NC", 4)-1}')
    if o.get('stagw'): e('s_add_u32 s5, s35, s32\ns_and_b32 s5, s5, 3')
    if o['rotx']: e('s_and_b32 s7, s34, 1\ns_mul_i32 s7, s7, 5\ns_add_u32 s7, s7, s6\ns_sub_u32 s79, s7, 10\ns_cmp_ge_u32 s7, 10\ns_cselect_b32 s7, s79, s7')
    else: e('s_mov_b32 s7, s6')
    e('''v_lshrrev_b32 v16, 4, v0
         v_and_b32 v17, 15, v0
         v_lshrrev_b32 v18, 3, v0
         v_and_b32 v19, 7, v0''')
    e('''v_lshrrev_b32 v20, 2, v17
         v_xor_b32 v20, v20, v16
         v_lshlrev_b32 v20, 6, v20
         v_and_b32 v21, 3, v17
         v_lshl_add_u32 v20, v21, 4, v20
         v_lshl_add_u32 v2, v16, 13, v20
         v_add_u32 v3, 31744, v2
         v_add_u32 v4, 63488, v2
         v_add_u32 v5, 95232, v2''')
    if o.get('fakewq'): e('v_lshlrev_b32 v2, 4, v0\nv_mov_b32 v3, v2\nv_mov_b32 v4, v2\nv_mov_b32 v5, v2')
    if o.get('fakewq2'): e('v_lshlrev_b32 v2, 4, v17\nv_mul_u32_u24 v3, 8448, v16\nv_add_u32 v2, v2, v3\nv_add_u32 v3, 32768, v2\nv_add_u32 v4, 65536, v2\nv_add_u32 v5, 98304, v2')
    e('''v_lshl_add_u32 v24, v16, 8, v20
         v_xor_b32 v21, v17, v16
         v_lshlrev_b32 v21, 4, v21
         v_lshl_add_u32 v25, v16, 8, v21
         v_xor_b32 v26, 64, v25
         v_xor_b32 v27, 128, v25
         v_xor_b32 v28, 192, v25''')
    e('''s_mul_i32 s79, s32, 20480
         v_lshrrev_b32 v20, 1, v18
         v_xor_b32 v20, v20, v19
         v_lshlrev_b32 v20, 4, v20
         v_mul_u32_u24 v21, 1280, v18
         v_add_u32 v21, s79, v21
         v_add_u32 v6, v21, v20
         v_xor_b32 v20, 64, v20
         v_add_u32 v7, v21, v20
         v_add_u32 v7, 9216, v7''')
    e(f'''s_mul_i32 s64, s32, {RINGB}
         s_lshl_b32 s65, s32, 13
         s_add_u32 s65, s65, {KVB}
         s_lshl_b32 s66, s32, 11
         s_add_u32 s66, s66, {XB}
         s_lshl_b32 s67, s34, 2
         s_add_u32 s67, s67, s32''')
    e('''s_lshl_b32 s58, s67, 8
         s_add_u32 s57, s58, 5242880
         s_lshl_b32 s79, s7, 19
         s_add_u32 s56, s58, s79
         s_mul_i32 s61, s35, 81920
         s_add_u32 s60, s61, 1280
         s_lshl_b32 s79, s7, 7
         s_add_u32 s59, s61, s79
         s_lshl_b32 s62, s35, 6
         s_add_u32 s62, s62, s67
         s_lshl_b32 s62, s62, 13
         s_add_u32 s63, s62, 262144''')
    if o.get('fakewq'): e('s_mul_i32 s58, s67, 163840\ns_add_u32 s57, s58, 163840\ns_lshl_b32 s79, s7, 14\ns_add_u32 s56, s58, s79')
    e('s_waitcnt lgkmcnt(0)')
    e('s_cmp_eq_u32 s33, 0')
    for srd, pa, pb, sz in ((12, 36, 46, 1310720), (16, 38, 48, 8388608), (20, 40, 50, 8388608), (8, 42, 52, 5242880), (24, 44, 54, 5242880)):
        e(f's_cselect_b32 s{srd}, s{pa}, s{pb}\ns_cselect_b32 s{srd+1}, s{pa+1}, s{pb+1}\ns_mov_b32 s{srd+2}, {sz}\ns_mov_b32 s{srd+3}, 0x20000')
    e(f's_mov_b32 s30, {0x10000000}\ns_mov_b32 s31, 0x20000')
    stamp()
    def dma_wq(n):
        L = [lambda: e(f's_add_u32 m0, s64, {(n%R)*4096}')]
        for i in range(4):
            L.append(lambda i=i: e.vm(f'buffer_load_dwordx4 v{2+i}, s[8:11], s56 offen offset:{i*1024} {o["nt_wq"]} lds', ('w', n)))
        def adv():
            e('s_add_u32 s56, s56, %d' % (4096 if o.get('fakewq') else 131072))
            if n % 4 == 3: e('s_cmp_eq_u32 s56, s57\ns_cselect_b32 s56, s58, s56')
        L.append(adv); return L
    def oinfo(j):
        r = j >> 4; sb = j & 3
        i = ((j & 15) >> 2) if r < 2 else 2*((j-32) >> 2)
        return r, i, sb
    def dma_wo(j):
        n = 40 + j; r, i, sb = oinfo(j)
        def pre():
            if sb == 0: e(f's_add_u32 s75, s{68+i}, s{72+r}')
            else: e('s_add_u32 s75, s75, 40960')
            e(f's_add_u32 m0, s64, {(n%R)*4096}')
        L = [pre]
        for q in range(4):
            L.append(lambda q=q: e.vm(f'buffer_load_dwordx4 v{2+q}, s[24:27], s75 offen offset:{q*1024} {o["nt_wo"]} lds', ('w', n)))
        L.append(lambda: None); return L
    def dma_ring(n):
        if n < 40: return dma_wq(n)
        if n < 80: return dma_wo(n-40)
        return None
    def dma_x(s):
        def f():
            e(f's_add_u32 m0, s66, {(s%XS)*8192}')
            for i in range(2): e.vm(f'buffer_load_dwordx4 v{6+i}, s[12:15], s59 offen offset:{i*1024} {o["nt_x"]} lds', ('x', s))
            e('s_add_u32 s59, s59, 128\ns_cmp_eq_u32 s59, s60\ns_cselect_b32 s59, s61, s59')
        return f
    def dma_kv(j):
        isv = j >= 2; srd = 's[20:23]' if isv else 's[16:19]'; so = 62 + (j & 1)
        def half(hh):
            def f():
                if hh == 0:
                    e.wait(lg=[('c', j-1)]); e('s_mov_b32 m0, s65'); sr = f's{so}'
                else:
                    e(f's_add_u32 s79, s{so}, 4096\ns_add_u32 m0, s65, 4096'); sr = 's79'
                for i in range(o.get('kvn', 4) if not o.get('skipkv') else 0):
                    e.vm(f'buffer_load_dwordx4 v{24 if isv else 25+i}, {srd}, {sr} offen offset:{i*1024} {o["nt_kv"]} lds', ('kv', j))
            return f
        return [half(0), half(1)]
    P0 = o.get('P0', 2)
    if o.get('cpf') and o.get('cpf0') == 1: code_pf()
    dma_x(0)()
    for n in range(P0):
        for f in dma_wq(n): f()
    FU = o.get('fuse')
    if o.get('cpf') and not o.get('cpf0'): code_pf()
    if FU: mb_clear(e, o)
    ring_at = {}; nxt = P0
    for t in range(80):
        k = 0
        while nxt <= t + R and nxt < 80 and k < o.get('ramp', 3):
            ring_at.setdefault(t, []).append(nxt); nxt += 1; k += 1
    x_at = {}
    x_at.setdefault(o.get('x1T', 0), []).append(1)
    if o.get('xjit'):
        for s_ in range(2, 10): x_at.setdefault(4*(s_ - 2) + 3, []).append(s_)
    else:
        for s_ in range(2, XS): x_at.setdefault(3, []).append(s_)
        for s_ in range(XS, 10): x_at.setdefault(4*(s_ - XS) + 3, []).append(s_)
    e('''v_lshrrev_b32 v20, 5, v0
         v_bfe_u32 v21, v0, 4, 1
         v_bfe_u32 v22, v0, 2, 2
         v_and_b32 v23, 3, v0''')
    e('''v_lshl_add_u32 v8, v20, 3, v22
         v_lshlrev_b32 v8, 8, v8
         v_lshl_add_u32 v8, v22, 6, v8
         v_lshl_add_u32 v8, v21, 5, v8
         v_and_b32 v16, 1, v23
         v_lshrrev_b32 v17, 1, v23
         v_lshl_add_u32 v16, v16, 1, v17
         v_lshl_add_u32 v8, v16, 3, v8
         v_add_u32 v8, s64, v8
         v_xor_b32 v9, 64, v8
         v_xor_b32 v10, 128, v8
         v_xor_b32 v11, 192, v8''')
    e('''v_lshl_add_u32 v29, v20, 2, v22
         v_lshlrev_b32 v29, 8, v29
         v_lshl_add_u32 v29, v22, 6, v29
         v_lshl_add_u32 v29, v21, 5, v29
         v_lshl_add_u32 v29, v23, 3, v29
         v_add_u32 v29, s65, v29''')
    e('''v_lshl_add_u32 v31, v20, 2, v22
         v_lshlrev_b32 v31, 7, v31
         v_lshrrev_b32 v16, 1, v22
         v_lshl_add_u32 v31, v16, 6, v31
         v_lshl_add_u32 v31, v21, 5, v31
         v_lshl_add_u32 v31, v23, 3, v31
         v_add_u32 v31, s64, v31''')
    e(f'''v_and_b32 v16, 31, v0
         v_bfe_u32 v17, v0, 1, 3
         v_xor_b32 v17, v17, v20
         v_lshlrev_b32 v17, 4, v17
         v_lshl_add_u32 v12, v16, 7, v17
         v_add_u32 v12, {XB}, v12
         v_xor_b32 v13, 32, v12
         v_xor_b32 v14, 64, v12
         v_xor_b32 v15, 96, v12
         v_and_b32 v17, 15, v0
         v_xor_b32 v17, v17, v20
         v_lshlrev_b32 v17, 4, v17
         v_lshl_add_u32 v30, v16, 8, v17
         v_add_u32 v30, s65, v30''')
    e('s_lshl_b32 s79, s34, 2')
    for i in range(4):
        e(f's_add_u32 s3, s32, {i}\ns_and_b32 s3, s3, 3\ns_add_u32 s3, s3, s79\ns_mul_i32 s{68+i}, s3, 163840')
    e('s_lshr_b32 s3, s32, 1\ns_add_u32 s74, s3, 8\ns_add_u32 s73, s32, 4\ns_mov_b32 s72, s32')
    e('s_lshl_b32 s4, s33, 4\ns_add_u32 s4, s4, s35\ns_mul_i32 s4, s4, 10')
    for r in range(3):
        e(f'''s_add_u32 s{72+r}, s{72+r}, s81
              s_sub_u32 s3, s{72+r}, 10
              s_cmp_ge_u32 s{72+r}, 10
              s_cselect_b32 s{72+r}, s3, s{72+r}
              s_add_u32 s3, s4, s{72+r}
              s_lshl_b32 s3, s3, 3
              s_add_u32 s3, s3, s34
              s_lshl_b32 s{76+r}, s3, 13
              s_lshl_b32 s{72+r}, s{72+r}, 7''')
    if o.get('pre'):
        for i in range(1, 4): e(f's_add_u32 s3, s32, {i}\ns_and_b32 s3, s3, 3\ns_sub_u32 s3, s3, s32\ns_lshl_b32 s{39+i}, s3, 13')
    PFS = o.get('pfs', 128)
    if o.get('pf') or o.get('pfT'): e(f's_mul_i32 s43, s67, 163840\ns_mul_i32 s3, s35, 10240\ns_add_u32 s43, s43, s3\nv_mul_u32_u24 v64, {PFS}, v0')
    def pf(q):
        off = min(q*64*PFS, 10240 - 64*PFS)
        return lambda: e(f's_add_u32 s79, s43, {off}\nbuffer_load_dword v{65+q}, v64, s[24:27], s79 offen {o.get("pfm", "")}')
    c = (128 ** -0.5) * math.log2(math.e)
    import struct
    e(f's_mov_b32 s80, {hex(struct.unpack("<I", struct.pack("<f", c))[0])}')
    AF, BF, ACC = 96, 80, 128
    def reads_q(t):
        b = t & 1; L = []
        s = t >> 2; tt = t & 3
        for qb in range(2):
            L.append(lambda qb=qb: e.lg(f'ds_read_b128 {vr(BF+b*8+qb*4,4)}, v{12+tt} offset:{(s%XS)*8192+qb*4096}', ('f', t)))
        for db in range(4):
            for u in range(2):
                L.append(lambda db=db, u=u: e.lg(f'ds_read_b64_tr_b16 {vr(AF+b*16+db*4+2*u,2)}, v{8+db} offset:{(t%R)*4096+u*1024}', ('f', t)))
        return L
    def copy_items(j):
        L = []
        if j < 2:
            for t in range(8):
                def f(t=t):
                    if t: e(f'v_xor_b32 v{16+t}, {t*32}, v30')
                    e.lg(f'ds_read_b128 {vr(j*32+t*4,4,"a")}, v{16+t if t else 30}', ('c', j))
                L.append(f)
        else:
            for db in range(4):
                for t in range(2):
                    for u in range(2):
                        def f(db=db, t=t, u=u):
                            if db and t == 0 and u == 0: e(f'v_xor_b32 v{16+db}, {db*64}, v29')
                            e.lg(f'ds_read_b64_tr_b16 {vr(j*32+(db*2+t)*4+2*u,2,"a")}, v{16+db if db else 29} offset:{(16*t+8*u)*256}', ('c', j))
                        L.append(f)
        return L
    PRE = o.get('pre', 0)
    FB = {k: ('a', 192 + (k & 1)*16) for k in range(40)}; TK = {k: k - 1 for k in range(40)}
    if PRE:
        pool = [['a', 128+16*q, -9, 7] for q in range(4)] + [['a', 192+16*q, -9, 99] for q in range(4)]
        pool += [['v', 32+16*q, -3, 35] for q in range(2)] + [['v', 192+16*q, 1, 15] for q in range(4)]
        NA = o.get('na', 8); prev = 0
        for k in range(40):
            T = -1 if k < NA else max(prev + 1, min(k - 1, o.get('t8', 1) + int(o.get('sl', 1.19)*(k - NA))))
            while True:
                c = [p for p in pool if p[2] <= T and p[3] >= k]
                if c: break
                T += 1
            assert T <= k - 1 or k < NA, (k, T)
            p = min(c, key=lambda p: (p[3], p[2])); p[2] = k + 1
            FB[k] = (p[0], p[1]); TK[k] = T; prev = max(T, 0)
        o['_sched'] = [(k, TK[k], FB[k]) for k in range(40)]
    def fr(j, q, n): return vr(FB[j][1] + q, n, FB[j][0])
    def reads_o(j):
        n = 40 + j; L = []
        for tt in range(2):
            for nb in range(2):
                for u in range(2):
                    L.append(lambda tt=tt, nb=nb, u=u: e.lg(f'ds_read_b64_tr_b16 {fr(j, (tt*2+nb)*4+2*u, 2)}, v{6+nb} offset:{(n%R)*4096+(16*tt+8*u)*128}', ('f', n)))
        return L
    def run_gaps(mfmas, gaps):
        for g, m in enumerate(mfmas):
            e(m)
            for f in gaps[g]: f()
    def wo_voff():
        e('''v_lshrrev_b32 v2, 3, v0
             v_bfe_u32 v3, v0, 4, 1
             v_lshlrev_b32 v3, 2, v3
             v_and_b32 v4, 7, v0
             v_xor_b32 v3, v3, v4
             v_mul_u32_u24 v2, 1280, v2
             v_lshl_add_u32 v2, v3, 4, v2
             v_add_u32 v3, 9216, v2
             v_add_u32 v4, 18432, v2
             v_add_u32 v5, 27648, v2''')
    e.wait(vm=[('x', 0), ('w', 0)]); e('s_barrier')
    for f in reads_q(0): f()
    kvT = o['kvT']
    copy_sched = {}; late = []; stag = o.get('stag'); NC = o.get('NC', 4); CS = o.get('CS', 2)
    kv_at = {}; cp_at = {}
    lab = [0]
    def ghost(c, fs):
        def f():
            lab[0] += 1; sv = (list(e.vmq), list(e.lgq))
            e(f's_cmp_lg_u32 s5, {c}\ns_cbranch_scc1 Lg{lab[0]}')
            e.lgq = []
            if len(fs) > 5: e('s_waitcnt lgkmcnt(7)')
            for g in fs: g()
            e(f'Lg{lab[0]}:'); e.vmq, e.lgq = sv
        return f
    for j in range(4):
        it = copy_items(j)
        if stag:
            for c in range(NC):
                T = kvT[j] + CS*c
                kv_at.setdefault(T, []).append(ghost(c, dma_kv(j) + [pf(q) for q in o.get('pf', {}).get(str(j), [])]))
                if j < 3:
                    h = len(it)//2
                    cp_at.setdefault(T + R, []).append(ghost(c, it[:h])); cp_at.setdefault(T + R + 1, []).append(ghost(c, it[h:]))
                else: assert T <= 39 - R - 1
            if j == 3: late = it
            continue
        if kvT[j] + R + (len(it)-1)//4 > 39:
            assert j == 3; late = it; continue
        for q in range(0, len(it), 4): copy_sched.setdefault(kvT[j] + R + q//4, []).extend([(j, f) for f in it[q:q+4]])
    for t in range(40):
        b = t & 1
        e.wait(lg=[('f', t)])
        trace(1, t)
        gaps = [[] for _ in range(8)]
        if t % 4 == 3 and t < 39:
            e.wait(vm=[('x', (t >> 2) + 1)])
            if not o.get('nobar'): e('s_barrier')
        for k, n in enumerate(ring_at.get(t, [])):
            d = dma_ring(n)
            if n == 40: d[0] = (lambda f=d[0]: (wo_voff(), f()))
            if k == 0:
                gaps[0] += [d[0], d[1]]; gaps[1] += [d[2]]; gaps[2] += [d[3]]; gaps[3] += [d[4], d[5]]
            else: gaps[5 + k] += d
        if t < 39:
            rd = reads_q(t + 1)
            gaps[1].append(lambda t=t: e.wait(vm=[('w', t + 1)]))
            for i, f in enumerate(rd): gaps[1 + i//2].append(f)
        for s_ in x_at.get(t, []): gaps[4].append(dma_x(s_))
        if FU and t and t == o.get('clrT'): gaps[5].append(lambda: mb_clear2(e, o))
        for q, T_ in enumerate(o.get('pfT', [])):
            if T_ == t: gaps[5].append(pf(q))
        if stag:
            gaps[6] += cp_at.get(t, []); gaps[7] += kv_at.get(t, [])
        elif t in kvT:
            kv = dma_kv(kvT.index(t)); gaps[5].append(kv[0]); gaps[6].append(kv[1])
        if t in copy_sched:
            j0 = copy_sched[t][0][0]
            gaps[6].append(lambda j0=j0: e.wait(vm=[('kv', j0)]))
            for i, (j, f) in enumerate(copy_sched[t]): gaps[6 + i//2].append(f)
        order = [(db, qb) for db in range(4) for qb in range(2)] if t < 39 else [(db, qb) for qb in range(2) for db in range(4)]
        ms = [mf(vr(ACC+qb*64+db*16,16), vr(AF+b*16+db*4,4), vr(BF+b*8+qb*4,4), vr(ACC+qb*64+db*16,16) if t else '0') for db, qb in order]
        if PRE and t == 38:
            gaps[0].append(lambda: e('v_mov_b32 v6, v31\nv_xor_b32 v7, 64, v31'))
            for q, f in enumerate(late[:8]): gaps[[0, 0, 6, 6, 6, 7, 7, 7][q]].append(f)
        if PRE and t == 39:
            for q, f in enumerate(late[8:]): gaps[[0, 0, 1, 1, 1, 2, 2, 2][q]].append(f)
            for q in range(32):
                gaps[[3, 4, 5, 6, 7][min(4, (q + 2)//7)]].append(lambda q=q: e(f'v_cvt_pk_bf16_f32 v{32+q}, v{ACC+2*q}, v{ACC+2*q+1}'))
        run_gaps(ms, gaps)
    stamp()
    QP = [32, 64]; S = [96, 16]; P = [112, 120]; OA = [128, 192]; OP = [64, 96]
    if not PRE: e('v_mov_b32 v6, v31\nv_xor_b32 v7, 64, v31')
    def cvtq(qb):
        return [f'v_cvt_pk_bf16_f32 v{QP[qb]+i}, v{ACC+qb*64+2*i}, v{ACC+qb*64+2*i+1}' for i in range(32)]
    def qk(qb):
        return [mf(vr(S[qb],16), vr(qb*32+t*4,4,'a'), vr(QP[qb]+t*4,4), vr(S[qb],16) if t else '0') for t in range(8)]
    def softmax(qb):
        s = S[qb]; m, t2, l = (8, 9, 10) if qb == 0 else (12, 13, 14)
        L = [f'v_max3_f32 v{m}, v{s}, v{s+1}, v{s+2}', f'v_max3_f32 v{t2}, v{s+3}, v{s+4}, v{s+5}']
        L += [f'v_max3_f32 v{m}, v{m}, v{s+6}, v{s+7}', f'v_max3_f32 v{t2}, v{t2}, v{s+8}, v{s+9}']
        L += [f'v_max3_f32 v{m}, v{m}, v{s+10}, v{s+11}', f'v_max3_f32 v{t2}, v{t2}, v{s+12}, v{s+13}']
        L += [f'v_max3_f32 v{m}, v{m}, v{s+14}, v{s+15}', f'v_max_f32 v{m}, v{m}, v{t2}', f'v_mov_b32 v{t2}, v{m}']
        L += [f'v_permlane32_swap_b32 v{m}, v{t2}', f'v_max_f32 v{m}, v{m}, v{t2}', f'v_mul_f32 v{m}, s80, v{m}']
        for i in range(16): L.append(f'v_fma_f32 v{s+i}, v{s+i}, s80, -v{m}')
        for i in range(16): L.append(f'v_exp_f32 v{s+i}, v{s+i}')
        L += [f'v_add_f32 v{l}, v{s}, v{s+1}', f'v_add_f32 v{t2}, v{s+2}, v{s+3}']
        for i in range(4, 16, 2): L += [f'v_add_f32 v{l}, v{l}, v{s+i}', f'v_add_f32 v{t2}, v{t2}, v{s+i+1}']
        L += [f'v_add_f32 v{l}, v{l}, v{t2}', f'v_mov_b32 v{t2}, v{l}', f'v_permlane32_swap_b32 v{l}, v{t2}', f'v_add_f32 v{l}, v{l}, v{t2}', f'v_rcp_f32 v{l}, v{l}']
        for i in range(16): L.append(f'v_mul_f32 v{s+i}, v{s+i}, v{l}')
        for i in range(8): L.append(f'v_cvt_pk_bf16_f32 v{P[qb]+i}, v{s+2*i}, v{s+2*i+1}')
        return L
    def pv(qb):
        return [mf(vr(OA[qb]+db*16,16), vr(64+qb*32+(db*2+t)*4,4,'a'), vr(P[qb]+t*4,4), vr(OA[qb]+db*16,16) if t else '0') for t in range(2) for db in range(4)]
    def cvto(qb):
        L = []
        for t in range(8):
            for i in range(4): L.append(f'v_cvt_pk_bf16_f32 v{OP[qb]+t*4+i}, v{OA[qb]+t*8+2*i}, v{OA[qb]+t*8+2*i+1}')
            L.append(('w', qb, t))
        return L
    def emit_item(x):
        if isinstance(x, tuple):
            _, qb, t = x
            e.lg(f'ds_write_b128 v11, {vr(OP[qb]+t*4,4)} offset:{qb*ODELTA+t*1024}', ('ow',))
        elif callable(x): x()
        else: e(x)
    def inter(ms, fill, start=0, per=None):
        fill = list(fill); n = len(ms) - start
        per = per or -(-len(fill) // n)
        for g, m in enumerate(ms):
            e(m)
            if g >= start:
                for x in fill[:per]: emit_item(x)
                fill = fill[per:]
        for x in fill: emit_item(x)
    def RD(k): return [lambda: e.wait(vm=[('w', 40 + k)])] + reads_o(k) if k < NA else []
    def DM(k):
        if k - 6 >= NA - 1: return []
        d = dma_ring(40 + k); return [lambda: (e.wait(lg=[('f', 34 + k)]), d[0]())] + d[1:5]
    def mix(L, ex):
        L = list(L)
        for pos, it in sorted(ex, key=lambda x: -x[0]): L[pos:pos] = it
        return L
    if PRE:
        c1 = cvtq(1); ms = qk(0); rr = RD(0) + RD(1)
        rr = [rr[0:3], rr[3:5], rr[5:7], rr[7:9], rr[9:12], rr[12:14], rr[14:16], rr[16:18]]
        for g, m in enumerate(ms):
            e(m)
            for x in c1[4*g:4*g+4]: e(x)
            for f in rr[g]: f()
        e(f'v_lshlrev_b32 v11, 4, v0\ns_lshl_b32 s79, s32, 13\ns_add_u32 s79, s79, {XB}\nv_add_u32 v11, s79, v11')
        ms = qk(1)
        e(ms[0])
        for f in DM(6): f()
        e(ms[1])
        for f in RD(2): f()
        a0 = o.get('a0', (10, 25, 40, 60, 70)); a1 = o.get('a1', (0, 15, 35, 50, 70))
        inter(ms[2:], mix(softmax(0), zip(a0, [DM(7), DM(8), RD(3), DM(9), RD(4)])), per=6)
        inter(pv(0), mix(softmax(1), zip(a1, [DM(10), RD(5), DM(11), RD(6), DM(12)])), per=6)
        e.wait(lg=[('c', 3)])
        e('s_barrier')
        c0 = cvto(0); rr = RD(7)
        OWD = o.get('owd', 0); ows = {}
        for q in range(16 if OWD else 0):
            g_ = max((q*OWD)//16, q); ows.setdefault(g_, []).append(('w', q >> 3, q & 7))
        if rr: rr[0]()
        for g, m in enumerate(pv(1)):
            e(m)
            for x in c0[5*g:5*g+(4 if OWD else 5)]: emit_item(x)
            for x in ows.get(g, []): emit_item(x)
            if rr: rr[1 + g]()
    else:
        e.wait(lg='*')
        for x in cvtq(0): e(x)
        if late:
            c1 = cvtq(1); ms = qk(0)
            for g, m in enumerate(ms):
                e(m)
                for x in c1[4*g:4*g+4]: e(x)
                if g == 3: e.wait(vm=[('kv', 3)])
                if g >= 4:
                    for f in late[4*(g-4):4*(g-4)+4]: f()
        else: inter(qk(0), cvtq(1))
        sm0 = softmax(0); sm1 = softmax(1)
        e(f'v_lshlrev_b32 v11, 4, v0\ns_lshl_b32 s79, s32, 13\ns_add_u32 s79, s79, {XB}\nv_add_u32 v11, s79, v11')
        inter(qk(1), sm0, start=2, per=5)
        inter(pv(0), sm1, start=0, per=5)
        e.wait(lg=[('c', 3)])
        e('s_barrier')
        e.wait(vm=[('w', 40)])
        for f in reads_o(0): f()
        c0 = cvto(0)
        inter(pv(1), c0, start=1, per=5)
        for i in range(1, 4):
            e(f's_add_u32 s79, s32, {i}\ns_and_b32 s79, s79, 3\ns_lshl_b32 s79, s79, 13\ns_add_u32 s79, s79, {XB}\nv_lshlrev_b32 v{7+i}, 4, v0\nv_add_u32 v{7+i}, s79, v{7+i}')
        e('v_lshlrev_b32 v12, 4, v0')
        for x in cvto(1): emit_item(x)
        if FU: tail_consts(e, o)
    stamp()
    def oreads(i):
        return [lambda qb=qb, t=t: e.lg(f'ds_read_b128 {vr((i-1)*64+qb*32+t*4,4,"a")}, v{7+i} offset:{qb*ODELTA+t*1024}', ('ob', i, t//2)) for t in range(8) for qb in range(2)]
    osched = {}
    r1 = oreads(1)
    osched[1] = r1[:6]; osched[2] = r1[6:11]; osched[3] = r1[11:]
    BJ = o.get('bj', 1)
    if BJ == 2: osched = {2: r1[:8], 3: r1[8:]}
    if BJ == 3: osched = {3: r1}
    for i in (2, 3):
        rr = oreads(i)
        for q in range(4): osched[4*(i-1) + q] = rr[4*q:4*q+4]
    def store_items(r):
        A = ACC + (r & 1)*64; L = []
        for bi in range(8):
            T = A + (bi >> 1)*16 + (bi & 1)*8
            L.append(lambda T=T: e(f'v_cvt_pk_bf16_f32 v{T}, v{T}, v{T+1}\nv_cvt_pk_bf16_f32 v{T+1}, v{T+2}, v{T+3}'))
            def f(T=T, bi=bi):
                e(f'v_cvt_pk_bf16_f32 v{T+2}, v{T+4}, v{T+5}\nv_cvt_pk_bf16_f32 v{T+3}, v{T+6}, v{T+7}')
                e(f'v_permlane32_swap_b32 v{T}, v{T+2}\nv_permlane32_swap_b32 v{T+1}, v{T+3}')
                if bi == 4: e(f's_add_u32 s{76+r}, s{76+r}, 4096')
                if not o.get('nost'): e.vm(f'buffer_store_dwordx4 {vr(T,4)}, v12, s[28:31], s{76+r} offen offset:{(bi&3)*1024} {o["st"]}', ('st', r))
            L.append(f)
        return L
    fl = dict(f0=None)
    for j in range(40):
        n = 40 + j; r, i, sb = oinfo(j)
        kp = [k for k in range(40) if (TK[k] == j - 1 and (not PRE or k >= NA)) or (PRE and j == 0 and k == NA - 1)]
        e.wait(lg=[('f', n)] + [('f', 40 + k) for k in kp if j or not PRE] + ([('ob', i, sb if (i == 1 and BJ > 1) else 3)] if (i and r == 0) else []))
        trace(31, j)
        if j == BJ:
            e.wait(lg=[('ow',)]); e('s_barrier')
        gaps = [[] for _ in range(8)]
        d = dma_ring(ring_at[n][0]) if n in ring_at else None
        if PRE: d = dma_ring(46 + kp[0]) if kp else None
        if d and PRE and j == 0:
            gaps[3] += [lambda: e.wait(lg=[('f', 39 + NA)]), d[0], d[1]]; gaps[4] += [d[2]]; gaps[5] += [d[3]]; gaps[6] += [d[4]]
        elif d:
            gaps[0] += [d[0], d[1]]; gaps[1] += [d[2]]; gaps[2] += [d[3]]; gaps[3] += [d[4]]
        for k in range(40):
            if TK[k] != j or (PRE and k < NA): continue
            gaps[1].append(lambda k=k: e.wait(vm=[('w', 40 + k)]))
            for q, f in enumerate(reads_o(k)): gaps[1 + q//2].append(f)
        if PRE:
            if j == 0:
                c1 = cvto(1)
                for g in range(8): gaps[g] += [lambda x=x: emit_item(x) for x in c1[5*g:5*g+(4 if OWD else 5)]]
            for g in range(8): gaps[g] += [lambda x=x: emit_item(x) for x in ows.get(8*j + 8 + g, [])]
            if j in (0, 3, 7): gaps[7].append(lambda i_={0: 1, 3: 2, 7: 3}[j]: e(f'v_add_u32 v{7+i_}, s{39+i_}, v11'))
            if j == 12:
                tc = []; tail_consts(lambda t_: tc.extend([x for x in t_.split('\n') if x.strip()]), o); tc.append('v_lshlrev_b32 v12, 4, v0')
                if o.get('cut'): tc += ['v_mov_b32 v24, 0x10000000', f'v_cmp_gt_u32 vcc, {o["cut"]}, v0', 'v_cndmask_b32 v12, v24, v12, vcc'] + ([f'v_cmp_gt_u32 vcc, {o["cutr"]}, v0', 'v_cndmask_b32 v19, v24, v19, vcc'] if o.get('cutr') else [])
                fl['tc'] = tc if FU else tc[-1:]
            if 12 <= j <= 15:
                for g in range(4, 8):
                    gaps[g].append(lambda x=fl['tc'][:4]: e('\n'.join(x))); fl['tc'] = fl['tc'][4:]
                assert j < 15 or not fl['tc']
        for q, f in enumerate(osched.get(j, [])): gaps[8 - max(3, len(osched[j])//2) + q//2].append(f)
        if r >= 1:
            it = store_items(r - 1)
            if FU:
                nsl = o.get('sp0', 8) if r == 1 else o.get('sp1', 4); per = 16 // nsl
                pos = [(((q >> 1)*nsl)//8, 4 + 2*(q & 1)) for q in range(16)] if nsl > 8 else [(q // per, {1: [5], 2: [4, 6], 4: [4, 5, 6, 7], 8: [4, 4, 5, 5, 6, 6, 7, 7]}[per][q % per]) for q in range(16)]
            elif o['spread']:
                nsl = 16 if r == 1 else 8
                pos = [((q*nsl)//16, (4 if q % 2 == 0 else 6) if nsl == 8 else 5) for q in range(16)]
            else: pos = [(0, g) for g in range(3, 8)] + [(1, g) for g in range(8)] + [(2, g) for g in range(8)]
            for q, f in enumerate(it):
                if pos[q][0] == (j & 15): gaps[pos[q][1]].append(f)
        if FU:
            def flag0():
                if fl['f0'] is None and ('st', 0) not in e.vmq:
                    fl['f0'] = 1; e.vm(flag(o, 0, 'v14', 's50'), ('fl', 0))
            if j == o.get('f0'): gaps[2].append(lambda: e.wait(vm=[('st', 0)]))
            if j >= 16 + o.get('sp0', 8): gaps[2].append(flag0)
            if o.get('early', 1):
                if j == o.get('jp', 33): gaps[7].append(lambda: e.vm(poll(o), ('poll',)))
                if j == o.get('jc', 36): gaps[3].append(lambda: early_check(e, o))
        A = ACC + (r & 1)*64
        ms = []
        for tt in range(2):
            t = 2*sb + tt
            for qb in range(2):
                for nb in range(2):
                    B = vr(OP[qb]+t*4, 4) if i == 0 else vr((i-1)*64+qb*32+t*4, 4, 'a')
                    T = vr(A+(nb*2+qb)*16, 16)
                    first = (i == 0 and sb == 0 and tt == 0)
                    ms.append((qb if (PRE and j == 0) else 0, mf(T, fr(j, (tt*2+nb)*4, 4), B, '0' if first else T)))
        ms = [m for _, m in sorted(ms, key=lambda x: x[0])]
        run_gaps(ms, gaps)
    stamp()
    if o.get('trace'): e('s_nop 7\ns_nop 7\nv_accvgpr_write_b32 a255, v31')
    if FU:
        assert fl['f0'] == 1 and (not e.vmq or e.vmq[-1] == ('st', 1)), e.vmq
        if not o.get('f1late'): flag1(e, o)
    e(f'''v_lshlrev_b32 v9, 4, v0
          v_add_u32 v8, s64, v9
          s_xor_b32 s79, s32, 1
          s_mul_i32 s79, s79, {RINGB}
          v_add_u32 v9, s79, v9
          s_add_u32 s3, s78, 4096
          s_bitcmp1_b32 s32, 0
          s_cbranch_scc1 L_odd''')
    e('@save fin')
    sv = (list(e.vmq), list(e.lgq))
    for par in range(2):
        if par:
            e('L_odd:'); e('@restore fin'); e.vmq, e.lgq = list(sv[0]), list(sv[1])
        for nb in range(2):
            T = ACC + (nb*2 + 1 - par)*16
            for c4 in range(4): e.lg(f'ds_write_b128 v8, {vr(T+4*c4,4)} offset:{(nb*4+c4)*1024}', ('xw',))
        e.wait(lg='*'); e('s_barrier')
        for q in range(8): e.lg(f'ds_read_b128 {vr(192+4*q,4)}, v9 offset:{q*1024}', ('xr', q//2))
        for nb in range(2):
            for G in range(2):
                T = ACC + (nb*2 + par)*16 + 8*G; X = 192 + nb*16 + 8*G
                e.wait(lg=[('xr', nb*2 + G)])
                for q in range(8): e(f'v_add_f32 v{T+q}, v{T+q}, v{X+q}')
                for q in range(4): e(f'v_cvt_pk_bf16_f32 v{T+q}, v{T+2*q}, v{T+2*q+1}')
                e(f'v_permlane32_swap_b32 v{T}, v{T+2}\nv_permlane32_swap_b32 v{T+1}, v{T+3}')
                e.vm(f'buffer_store_dwordx4 {vr(T,4)}, v12, s[28:31], {"s3" if nb else "s78"} offen offset:{par*2048+G*1024} {o["st"]}', ('st', 2))
        if par == 0: e('s_branch L_fin')
    e('L_fin:')
    if o.get('fuse') and o.get('f1late'): flag1(e, o, 4)
    if o.get('fuse'): fused_tail(e, o, stamp)
    if o['stamps']:
        e('s_waitcnt vmcnt(0)'); stamp()
        e(f's_memrealtime s[98:99]\ns_lshl_b32 s3, s2, 2\ns_add_u32 s3, s3, s32\ns_lshl_b32 s3, s3, 7\ns_add_u32 s3, s3, {STAMP_WS}\ns_waitcnt lgkmcnt(0)')
        if o.get('trace'):
            e(f's_lshl_b32 s4, s2, 2\ns_add_u32 s4, s4, s32\ns_lshl_b32 s4, s4, 9\ns_add_u32 s4, s4, {STAMP_WS+0x200000}\nv_lshlrev_b32 v2, 2, v0')
            e('v_accvgpr_read_b32 v11, a255\ns_nop 1\nbuffer_store_dword v1, v2, s[28:31], s4 offen\nbuffer_store_dword v11, v2, s[28:31], s4 offen offset:256\ns_waitcnt vmcnt(0)')
        e('v_mov_b32 v1, 0\nv_cmp_eq_u32 vcc, 0, v0\ns_and_saveexec_b64 s[4:5], vcc')
        for q in range(ns[0]): e(f'v_mov_b32 v2, s{82+2*q}\nbuffer_store_dword v2, v1, s[28:31], s3 offen offset:{4*q}')
        e(f'v_mov_b32 v2, s100\nbuffer_store_dword v2, v1, s[28:31], s3 offen offset:64\nv_mov_b32 v2, s98\nbuffer_store_dword v2, v1, s[28:31], s3 offen offset:68')
    e('L_end1:\ns_endpgm')
    txt = e.finish()
    return txt, e

def k2(o):
    e = Em()
    e('s_cmp_ge_u32 s2, 256\ns_cbranch_scc1 L_end2')
    e('s_load_dwordx2 s[8:9], s[0:1], 96\ns_load_dwordx2 s[12:13], s[0:1], 80')
    if o['stamps']: e('s_memrealtime s[100:101]')
    e('v_lshrrev_b32 v1, 6, v0\nv_and_b32 v0, 63, v0\nv_readfirstlane_b32 s20, v1')
    e('s_mul_i32 s21, s2, 5\ns_add_u32 s21, s21, s20')
    e('s_lshr_b32 s22, s21, 2\ns_and_b32 s23, s21, 3')
    e('s_lshl_b32 s24, s22, 16\ns_lshl_b32 s25, s23, 11\ns_add_u32 s24, s24, s25')
    e('v_lshlrev_b32 v1, 4, v0')
    e(f's_mov_b32 s10, {0x10000000}\ns_mov_b32 s11, 0x20000\ns_mov_b32 s14, 2621440\ns_mov_b32 s15, 0x20000')
    e('s_waitcnt lgkmcnt(0)')
    for hg in range(8):
        for G in range(2): e.vm(f'buffer_load_dwordx4 {vr(16+hg*8+G*4,4)}, v1, s[8:11], s24 offen offset:{G*1024} {o["rd"]}', hg)
        if hg < 7: e('s_add_u32 s24, s24, 8192')
    e('''s_mul_i32 s26, s22, 6554
         s_lshr_b32 s26, s26, 16
         s_mul_i32 s27, s26, 10
         s_sub_u32 s27, s22, s27
         s_lshr_b32 s28, s26, 4
         s_and_b32 s26, s26, 15
         s_mul_i32 s26, s26, 163840
         s_mul_i32 s28, s28, 1280
         s_add_u32 s26, s26, s28
         s_lshl_b32 s27, s27, 7
         s_add_u32 s26, s26, s27
         s_lshr_b32 s27, s23, 1
         s_lshl_b32 s27, s27, 6
         s_add_u32 s26, s26, s27
         s_and_b32 s27, s23, 1
         s_mul_i32 s27, s27, 81920
         s_add_u32 s26, s26, s27
         v_and_b32 v2, 31, v0
         v_lshrrev_b32 v3, 5, v0
         v_mul_u32_u24 v2, 2560, v2
         v_lshl_add_u32 v2, v3, 4, v2''')
    A = 80
    for hg in range(8):
        e.wait(vm=[hg])
        for q in range(8):
            x = 16 + hg*8 + q
            if hg == 0: e(f'v_lshlrev_b32 v{A+2*q}, 16, v{x}\nv_and_b32 v{A+2*q+1}, 0xffff0000, v{x}')
            else: e(f'v_lshlrev_b32 v4, 16, v{x}\nv_and_b32 v{x}, 0xffff0000, v{x}\nv_add_f32 v{A+2*q}, v{A+2*q}, v4\nv_add_f32 v{A+2*q+1}, v{A+2*q+1}, v{x}')
    for q in range(8): e(f'v_cvt_pk_bf16_f32 v{8+q}, v{A+2*q}, v{A+2*q+1}')
    for G in range(2):
        e(f'buffer_store_dwordx4 {vr(8+4*G,4)}, v2, s[12:15], s26 offen offset:{G*32}')
    if o['stamps']:
        e('s_waitcnt vmcnt(0)')
        e(f's_memrealtime s[98:99]\ns_lshl_b32 s3, s21, 7\ns_add_u32 s3, s3, {STAMP_WS+0x100000}\ns_waitcnt lgkmcnt(0)')
        e('v_mov_b32 v1, 0\nv_cmp_eq_u32 vcc, 0, v0\ns_and_saveexec_b64 s[4:5], vcc')
        e(f'v_mov_b32 v2, s100\nbuffer_store_dword v2, v1, s[8:11], s3 offen offset:64\nv_mov_b32 v2, s98\nbuffer_store_dword v2, v1, s[8:11], s3 offen offset:68')
    e('L_end2:\ns_endpgm')
    return e.finish(), e

def header():
    L = open('cdna_kernels/' + NAME + '.s.ref').read().split('\n')
    return [l for l in L if l.startswith(';') and '@launch' not in l]
def build_text(hdr=None, **kw):
    o = dict(DEF); o.update(kw)
    t1, e1 = k1(o); t2, e2 = k2(o)
    if o.get('fuse'):
        return module((hdr or []) + ['; @launch grid=(256,1,1) block=(256,1,1) lds=163840'], [(NAME + '_kernel', t1, 512, 256, 102)]), e1
    lines = (hdr or []) + [f'; @launch kernel={NAME}_kernel grid=(256,1,1) block=(256,1,1) lds=163840',
                           f'; @launch kernel=reduce_kernel grid=(256,1,1) block=(320,1,1) lds=0']
    return module(lines, [(NAME + '_kernel', t1, 512, 256, 102), ('reduce_kernel', t2, 96, 96, 102)]), e1
if __name__ == '__main__':
    t, e1 = build_text(header())
    out = sys.argv[1] if len(sys.argv) > 1 else 'k.s'
    open(out, 'w').write(t)
    print('lines', t.count('\n'), 'nops', e1.nops, 'maxvm', e1.maxvm, 'maxlg', e1.maxlg)
```

```python
MB = 0x2000000
OOB = 0x10000000
def vr(b, n, k='v'): return f'{k}[{b}:{b+n-1}]'
def poll(o):
    if o.get('pa'): return f'v_mov_b32 v16, 0\nbuffer_atomic_{o["pa"]} v16, v18, s[28:31], s51 offen sc0 sc1'
    return 'buffer_load_dword v16, v18, s[28:31], s51 offen ' + o.get('pm', 'sc1')
def chk(o): return 'v_readfirstlane_b32 s52, v16\ns_or_b32 s52, s52, s53' if o.get('bm') else 'v_cmp_ne_u32 vcc, 0, v16\ns_or_b32 s52, vcc_lo, s53'
def flag(o, r, va, sa):
    if o.get('bm'): return ('v_lshlrev_b32 v17, 8, v17\n' if r else '') + f'buffer_atomic_or v17, {va}, s[28:31], {sa} offen offset:{96 if r == 3 else 0} sc1'
    if o.get('fa'): return f'buffer_atomic_{o["fa"]} v17, {va}, s[28:31], {sa} offen offset:{r*32} sc1'
    if o.get('fl'): return f'buffer_store_dwordx4 v[16:19], {va}, s[28:31], {sa} offen offset:{r*1024} sc1'
    return f'buffer_store_dword v17, {va}, s[28:31], {sa} offen offset:{r*32} {o.get("fm", "sc1")}'
def mb_clear(e, o):
    K = 5 if o.get('fl') else 0
    e(f"""s_load_dwordx4 s[36:39], s[0:1], 80
          s_lshl_b32 s44, s33, 4
          s_add_u32 s44, s44, s35
          s_lshl_b32 s49, s44, {12+K}
          s_add_u32 s49, s49, {MB}
          s_lshl_b32 s50, s32, {7+K}
          s_add_u32 s50, s50, s49
          s_lshl_b32 s51, s34, {9+K}
          s_add_u32 s51, s51, s50
          s_lshl_b32 s52, s34, {2+K}
          {'' if o.get('bm') else 's_add_u32 s50, s50, s52'}
          """)
    if not o.get('clrT'): mb_clear2(e, o)
def mb_clear2(e, o):
    K = 5 if o.get('fl') else 0
    e(f'v_and_b32 v16, 31, v0\nv_lshlrev_b32 v16, {2+K}, v16\nv_mov_b32 v17, 0')
    e.vm('buffer_store_dword v17, v16, s[28:31], s51 offen offset:%d %s' % (4 if K else 0, o.get('cm', 'sc1')), ('clr',))
def slice_loads(e, r, base, ureg=None):
    e(f's_lshl_b32 s48, s{ureg or 72+r}, 9\ns_add_u32 s48, s48, s45')
    for hg in range(8):
        e(f'buffer_load_dwordx4 {vr(base+hg*4,4)}, v19, s[28:31], s48 offen sc1')
        if hg < 7: e('s_add_u32 s48, s48, 8192')
def slice_sum(e, base, younger, ureg, ost, acc=20, out=28):
    for hg in range(8):
        e(f's_waitcnt vmcnt({7 - hg + younger})')
        for q in range(4):
            x = base + hg*4 + q
            if hg == 0: e(f'v_lshlrev_b32 v{acc+2*q}, 16, v{x}\nv_and_b32 v{acc+2*q+1}, 0xffff0000, v{x}')
            else: e(f'v_lshlrev_b32 v7, 16, v{x}\nv_and_b32 v{x}, 0xffff0000, v{x}\nv_add_f32 v{acc+2*q}, v{acc+2*q}, v7\nv_add_f32 v{acc+2*q+1}, v{acc+2*q+1}, v{x}')
    for q in range(4): e(f'v_cvt_pk_bf16_f32 v{out+q}, v{acc+2*q}, v{acc+2*q+1}')
    e(f's_add_u32 s48, s42, s{ureg}')
    e(f'buffer_store_dwordx4 {vr(out,4)}, v13, s[12:15], s48 offen {ost}')
def cons_base(e, c):
    e(f"""s_lshr_b32 s40, s{c}, 2
          s_and_b32 s41, s{c}, 3
          s_lshl_b32 s40, s40, 11
          s_lshl_b32 s41, s41, 7
          s_add_u32 s40, s40, s41
          s_mul_i32 s45, s44, 655360
          s_add_u32 s45, s45, s40
          s_mul_i32 s42, s35, 163840
          s_mul_i32 s43, s33, 1280
          s_add_u32 s42, s42, s43
          s_mul_i32 s43, s{c}, 20480
          s_add_u32 s42, s42, s43""")
def tail_consts(e, o):
    cons_base(e, 34)
    K = 5 if o.get('fl') else 0
    fv = 'v_lshrrev_b32 v14, 3, v0\nv_lshlrev_b32 v14, 14, v14\nv_and_b32 v17, 7, v0\nv_lshl_add_u32 v14, v17, 4, v14' if K else 'v_lshlrev_b32 v14, 9, v0'
    e(f"""s_mov_b32 s12, s36
          s_mov_b32 s13, s37
          s_mov_b32 s14, 2621440
          s_mov_b32 s16, s38
          s_mov_b32 s17, s39
          s_mov_b32 s18, 256
          s_lshl_b32 s53, 0x010101, s34
          s_mov_b32 s54, 0
          s_mov_b32 s55, {o.get('budget', 1024)}
          s_and_b32 s46, s32, 1
          s_lshl_b32 s47, s46, {7+K}
          s_sub_u32 s47, s50, s47
          s_lshl_b32 s43, s44, 3
          v_mov_b32 v16, {OOB}
          {fv}
          v_lshrrev_b32 v17, {5 if K else 2}, v0
          v_cmp_eq_u32 vcc, s46, v17
          v_cndmask_b32 v15, v16, v14, vcc
          v_cmp_gt_u32 vcc, {64 if K else 8}, v0
          v_cndmask_b32 v14, v16, v14, vcc
          v_lshlrev_b32 v18, {2+K}, v0
          v_add_u32 v18, {4 if K else 0}, v18
          v_cmp_gt_u32 vcc, {1 if o.get('bm') else 24}, v0
          v_cndmask_b32 v18, v16, v18, vcc
          v_lshrrev_b32 v20, 4, v0
          v_lshrrev_b32 v21, 1, v20
          v_and_b32 v20, 1, v20
          v_bfe_u32 v22, v0, 3, 1
          v_and_b32 v23, 7, v0
          v_lshlrev_b32 v19, 12, v21
          v_lshl_add_u32 v19, v20, 10, v19
          v_lshl_add_u32 v19, v22, 9, v19
          v_lshl_add_u32 v19, v23, 4, v19
          v_mul_u32_u24 v13, 2560, v23
          v_lshl_add_u32 v13, v21, 6, v13
          v_lshl_add_u32 v13, v20, 5, v13
          v_lshl_add_u32 v13, v22, 4, v13
          v_mov_b32 v17, 1
          {'v_lshlrev_b32 v17, s34, v17' if o.get('bm') else ''}
          v_mov_b32 v16, 0""")
def early_check(e, o):
    e.wait(vm=[('poll',)])
    e(chk(o) + '\ns_and_b32 s52, s52, 0xff\ns_cmp_lg_u32 s52, 0xff\ns_cbranch_scc1 L_noearly')
    slice_loads(e, 0, 32)
    e('s_mov_b32 s54, 1\nL_noearly:')
def flag1(e, o, y=0):
    e(f"""s_cmp_eq_u32 s54, 0
         s_cbranch_scc1 L_w0
         s_waitcnt vmcnt({8+y})
         s_branch L_w1
         L_w0:
         s_waitcnt vmcnt({y})
         L_w1:""")
    e(flag(o, 3 if o.get('noflag') else 1, 'v14', 's50'))
def fused_tail(e, o, stamp):
    e.vmq = []; e.lgq = []
    ost = o.get('ost', '')
    def spin(name, need):
        e(f"""L_sp{name}:
              {chk(o)}
              s_andn2_b32 s52, {need}, s52
              s_cbranch_scc0 L_ok{name}
              s_sub_u32 s55, s55, 1
              s_cbranch_scc1 L_to{name}
              {poll(o)}
              s_waitcnt vmcnt(0)
              s_branch L_sp{name}
              L_to{name}:
              s_lshl_b32 s52, s34, 2
              s_add_u32 s52, s52, s32
              s_lshl_b32 s52, 1, s52
              v_mov_b32 v4, s52
              v_mov_b32 v5, 0
              buffer_atomic_add_x2 v[4:5], v6, s[16:19], s43 offen sc0 sc1
              s_waitcnt vmcnt(0)
              v_readfirstlane_b32 s52, v5
              s_cmp_lg_u32 s52, 8
              s_cbranch_scc1 L_drop
              s_mov_b32 s53, -1
              L_ok{name}:""")
    e(poll(o))
    e(f"""v_mov_b32 v6, {OOB}
          v_cmp_eq_u32 vcc, 0, v0
          v_cndmask_b32 v6, v6, 0, vcc
          v_mov_b32 v2, 0
          v_mov_b32 v3, 1
          s_cmp_eq_u32 s54, 0
          s_cbranch_scc1 L_t0""")
    slice_sum(e, 32, 6, 72, ost)
    y = 2 if o.get('w2') else 0
    e(f's_waitcnt vmcnt({1+y})\ns_branch L_t1\nL_t0:\ns_waitcnt vmcnt({y})\nL_t1:')
    e(flag(o, 2, 'v15', 's47'))
    e('s_barrier')
    stamp()
    if y: e('s_waitcnt vmcnt(2)\ns_cmp_lg_u32 s54, 0\ns_cbranch_scc1 L_t2\ns_waitcnt vmcnt(1)\nL_t2:')
    spin('a', '0xffff')
    e('s_cmp_lg_u32 s54, 0\ns_cbranch_scc1 L_t3')
    slice_loads(e, 0, 32); slice_sum(e, 32, 0, 72, ost)
    e('L_t3:')
    slice_loads(e, 1, 224)
    e('s_bitcmp1_b32 s32, 0\ns_cbranch_scc0 L_even')
    slice_sum(e, 224, 0, 73, ost)
    e('s_branch L_drop\nL_even:')
    spin('b', '0xffffff')
    slice_loads(e, 2, 32)
    slice_sum(e, 224, 8, 73, ost)
    slice_sum(e, 32, 1, 74, ost, acc=20, out=8)
    e('L_drop:')
    e("""s_cmp_lg_u32 s32, 1
         s_cbranch_scc1 L_done
         buffer_atomic_add_x2 v[2:3], v6, s[16:19], s43 offen sc0 sc1
         s_waitcnt vmcnt(0)
         v_readfirstlane_b32 s56, v2
         v_readfirstlane_b32 s57, v3
         s_cmp_lg_u32 s57, 7
         s_cbranch_scc1 L_done
         L_fb:
         s_cmp_eq_u32 s56, 0
         s_cbranch_scc1 L_done
         s_ff1_i32_b32 s58, s56
         s_bitset0_b32 s56, s58
         s_lshr_b32 s59, s58, 2
         s_and_b32 s58, s58, 3""")
    cons_base(e, 59)
    e("""s_mov_b32 s60, s58
         L_fb2:
         s_add_u32 s61, s60, s81
         s_sub_u32 s62, s61, 10
         s_cmp_ge_u32 s61, 10
         s_cselect_b32 s61, s62, s61
         s_lshl_b32 s61, s61, 7""")
    slice_loads(e, 0, 32, ureg=61); slice_sum(e, 32, 0, 61, ost)
    e("""s_cmp_ge_u32 s60, 8
         s_cbranch_scc1 L_fb
         s_add_u32 s60, s60, 4
         s_cmp_lt_u32 s60, 8
         s_cbranch_scc1 L_fb2
         s_lshr_b32 s60, s58, 1
         s_add_u32 s60, s60, 8
         s_branch L_fb2
         L_done:""")
```

```python
import sys, math
from em import Em
from asmlib import NAME, module
from tail import *
STAMP_WS = 0x8000000
DEF = dict(nt_wq='', nt_x='', nt_kv='', nt_wo='', st='sc1', rd='', stamps=False, kvT=(1, 9, 17, 25), stag=1, G=5, rot=True, R=6, XS=4, rotx=True, spread=True)

def mf(d, a, b, c): return f'v_mfma_f32_32x32x16_bf16 {d}, {a}, {b}, {c}'
def vr(b, n, k='v'): return f'{k}[{b}:{b+n-1}]'

def k1(o):
    e = Em(); ns = [0]
    R = o['R']; XS = o['XS']
    RINGB = R*4096; XB = 4*RINGB; KVB = XB + max(XS, 4)*8192
    assert KVB + 32768 <= 163840
    ODELTA = KVB - XB
    def stamp():
        if o['stamps']:
            e.wait(lg='*'); e(f's_memtime s[{82+2*ns[0]}:{83+2*ns[0]}]\ns_waitcnt lgkmcnt(0)'); ns[0] += 1
    def trace(reg, idx):
        if o.get('trace'):
            e.wait(lg='*'); e(f's_memtime s[96:97]\ns_waitcnt lgkmcnt(0)\nv_writelane_b32 v{reg}, s96, {idx}')
    e('s_cmp_ge_u32 s2, 256\ns_cbranch_scc1 L_end1')
    e('s_load_dwordx16 s[36:51], s[0:1], 0\ns_load_dwordx4 s[52:55], s[0:1], 64\ns_load_dwordx2 s[28:29], s[0:1], 96')
    if o['stamps']: e('s_memrealtime s[100:101]')
    e('v_lshrrev_b32 v1, 6, v0\nv_and_b32 v0, 63, v0\nv_readfirstlane_b32 s32, v1')
    def code_pf():
        st = o['cpf']
        e(f'''s_getpc_b64 s[90:91]
              L_pc:
              s_sub_u32 s90, s90, L_pc-{NAME}_kernel
              s_subb_u32 s91, s91, 0
              s_lshl_b32 s92, s32, 6
              v_add_u32 v70, s92, v0
              v_mul_u32_u24 v70, {st}, v70''')
        for q in range(-(-(40960 if o["stamps"] else 32768) // (256*st))):
            e(f'''v_add_u32 v71, {q*256*st}, v70
                  v_min_u32 v71, L_end1-{NAME}_kernel, v71
                  v_mov_b32 v{67+8*q}, s91
                  v_add_co_u32 v{66+8*q}, vcc, s90, v71
                  v_addc_co_u32 v{67+8*q}, vcc, 0, v{67+8*q}, vcc''')
            e.vm(f'global_load_dword v{68+q}, v[{66+8*q}:{67+8*q}], off', ('cpf',))
    if o.get('cpf') and o.get('cpf0') == 2: code_pf()
    e('''s_and_b32 s33, s2, 7
         s_lshr_b32 s33, s33, 2
         s_and_b32 s34, s2, 3
         s_lshl_b32 s34, s34, 1
         s_bfe_u32 s79, s2, 0x10003
         s_add_u32 s34, s34, s79
         s_lshr_b32 s35, s2, 4''')
    if o['rot'] == 2: e('s_and_b32 s81, s35, 1')
    elif o['rot'] == 3: e('s_and_b32 s81, s35, 3')
    elif o['rot']: e('s_mul_i32 s81, s35, 10\ns_lshr_b32 s81, s81, 4')
    else: e('s_mov_b32 s81, 0')
    G = o.get('G', 10)
    e(f's_mul_i32 s6, s35, {G}\ns_lshr_b32 s6, s6, 4\ns_mul_i32 s6, s6, {10//G}')
    e(f's_and_b32 s5, s35, {o.get("NC", 4)-1}')
    if o.get('stagw'): e('s_add_u32 s5, s35, s32\ns_and_b32 s5, s5, 3')
    if o['rotx']: e('s_and_b32 s7, s34, 1\ns_mul_i32 s7, s7, 5\ns_add_u32 s7, s7, s6\ns_sub_u32 s79, s7, 10\ns_cmp_ge_u32 s7, 10\ns_cselect_b32 s7, s79, s7')
    else: e('s_mov_b32 s7, s6')
    e('''v_lshrrev_b32 v16, 4, v0
         v_and_b32 v17, 15, v0
         v_lshrrev_b32 v18, 3, v0
         v_and_b32 v19, 7, v0''')
    e('''v_lshrrev_b32 v20, 2, v17
         v_xor_b32 v20, v20, v16
         v_lshlrev_b32 v20, 6, v20
         v_and_b32 v21, 3, v17
         v_lshl_add_u32 v20, v21, 4, v20
         v_lshl_add_u32 v2, v16, 13, v20
         v_add_u32 v3, 31744, v2
         v_add_u32 v4, 63488, v2
         v_add_u32 v5, 95232, v2''')
    if o.get('fakewq'): e('v_lshlrev_b32 v2, 4, v0\nv_mov_b32 v3, v2\nv_mov_b32 v4, v2\nv_mov_b32 v5, v2')
    if o.get('fakewq2'): e('v_lshlrev_b32 v2, 4, v17\nv_mul_u32_u24 v3, 8448, v16\nv_add_u32 v2, v2, v3\nv_add_u32 v3, 32768, v2\nv_add_u32 v4, 65536, v2\nv_add_u32 v5, 98304, v2')
    e('''v_lshl_add_u32 v24, v16, 8, v20
         v_xor_b32 v21, v17, v16
         v_lshlrev_b32 v21, 4, v21
         v_lshl_add_u32 v25, v16, 8, v21
         v_xor_b32 v26, 64, v25
         v_xor_b32 v27, 128, v25
         v_xor_b32 v28, 192, v25''')
    e('''s_mul_i32 s79, s32, 20480
         v_lshrrev_b32 v20, 1, v18
         v_xor_b32 v20, v20, v19
         v_lshlrev_b32 v20, 4, v20
         v_mul_u32_u24 v21, 1280, v18
         v_add_u32 v21, s79, v21
         v_add_u32 v6, v21, v20
         v_xor_b32 v20, 64, v20
         v_add_u32 v7, v21, v20
         v_add_u32 v7, 9216, v7''')
    e(f'''s_mul_i32 s64, s32, {RINGB}
         s_lshl_b32 s65, s32, 13
         s_add_u32 s65, s65, {KVB}
         s_lshl_b32 s66, s32, 11
         s_add_u32 s66, s66, {XB}
         s_lshl_b32 s67, s34, 2
         s_add_u32 s67, s67, s32''')
    e('''s_lshl_b32 s58, s67, 8
         s_add_u32 s57, s58, 5242880
         s_lshl_b32 s79, s7, 19
         s_add_u32 s56, s58, s79
         s_mul_i32 s61, s35, 81920
         s_add_u32 s60, s61, 1280
         s_lshl_b32 s79, s7, 7
         s_add_u32 s59, s61, s79
         s_lshl_b32 s62, s35, 6
         s_add_u32 s62, s62, s67
         s_lshl_b32 s62, s62, 13
         s_add_u32 s63, s62, 262144''')
    if o.get('fakewq'): e('s_mul_i32 s58, s67, 163840\ns_add_u32 s57, s58, 163840\ns_lshl_b32 s79, s7, 14\ns_add_u32 s56, s58, s79')
    e('s_waitcnt lgkmcnt(0)')
    e('s_cmp_eq_u32 s33, 0')
    for srd, pa, pb, sz in ((12, 36, 46, 1310720), (16, 38, 48, 8388608), (20, 40, 50, 8388608), (8, 42, 52, 5242880), (24, 44, 54, 5242880)):
        e(f's_cselect_b32 s{srd}, s{pa}, s{pb}\ns_cselect_b32 s{srd+1}, s{pa+1}, s{pb+1}\ns_mov_b32 s{srd+2}, {sz}\ns_mov_b32 s{srd+3}, 0x20000')
    e(f's_mov_b32 s30, {0x10000000}\ns_mov_b32 s31, 0x20000')
    stamp()
    def dma_wq(n):
        L = [lambda: e(f's_add_u32 m0, s64, {(n%R)*4096}')]
        for i in range(4):
            L.append(lambda i=i: e.vm(f'buffer_load_dwordx4 v{2+i}, s[8:11], s56 offen offset:{i*1024} {o["nt_wq"]} lds', ('w', n)))
        def adv():
            e('s_add_u32 s56, s56, %d' % (4096 if o.get('fakewq') else 131072))
            if n % 4 == 3: e('s_cmp_eq_u32 s56, s57\ns_cselect_b32 s56, s58, s56')
        L.append(adv); return L
    def oinfo(j):
        r = j >> 4; sb = j & 3
        i = ((j & 15) >> 2) if r < 2 else 2*((j-32) >> 2)
        return r, i, sb
    def dma_wo(j):
        n = 40 + j; r, i, sb = oinfo(j)
        def pre():
            if sb == 0: e(f's_add_u32 s75, s{68+i}, s{72+r}')
            else: e('s_add_u32 s75, s75, 40960')
            e(f's_add_u32 m0, s64, {(n%R)*4096}')
        L = [pre]
        for q in range(4):
            L.append(lambda q=q: e.vm(f'buffer_load_dwordx4 v{2+q}, s[24:27], s75 offen offset:{q*1024} {o["nt_wo"]} lds', ('w', n)))
        L.append(lambda: None); return L
    def dma_ring(n):
        if n < 40: return dma_wq(n)
        if n < 80: return dma_wo(n-40)
        return None
    def dma_x(s):
        def f():
            e(f's_add_u32 m0, s66, {(s%XS)*8192}')
            for i in range(2): e.vm(f'buffer_load_dwordx4 v{6+i}, s[12:15], s59 offen offset:{i*1024} {o["nt_x"]} lds', ('x', s))
            e('s_add_u32 s59, s59, 128\ns_cmp_eq_u32 s59, s60\ns_cselect_b32 s59, s61, s59')
        return f
    def dma_kv(j):
        isv = j >= 2; srd = 's[20:23]' if isv else 's[16:19]'; so = 62 + (j & 1)
        def half(hh):
            def f():
                if hh == 0:
                    e.wait(lg=[('c', j-1)]); e('s_mov_b32 m0, s65'); sr = f's{so}'
                else:
                    e(f's_add_u32 s79, s{so}, 4096\ns_add_u32 m0, s65, 4096'); sr = 's79'
                for i in range(o.get('kvn', 4) if not o.get('skipkv') else 0):
                    e.vm(f'buffer_load_dwordx4 v{24 if isv else 25+i}, {srd}, {sr} offen offset:{i*1024} {o["nt_kv"]} lds', ('kv', j))
            return f
        return [half(0), half(1)]
    P0 = o.get('P0', 2)
    if o.get('cpf') and o.get('cpf0') == 1: code_pf()
    dma_x(0)()
    for n in range(P0):
        for f in dma_wq(n): f()
    FU = o.get('fuse')
    if o.get('cpf') and not o.get('cpf0'): code_pf()
    if FU: mb_clear(e, o)
    ring_at = {}; nxt = P0
    for t in range(80):
        k = 0
        while nxt <= t + R and nxt < 80 and k < o.get('ramp', 3):
            ring_at.setdefault(t, []).append(nxt); nxt += 1; k += 1
    x_at = {}
    x_at.setdefault(o.get('x1T', 0), []).append(1)
    if o.get('xjit'):
        for s_ in range(2, 10): x_at.setdefault(4*(s_ - 2) + 3, []).append(s_)
    else:
        for s_ in range(2, XS): x_at.setdefault(3, []).append(s_)
        for s_ in range(XS, 10): x_at.setdefault(4*(s_ - XS) + 3, []).append(s_)
    e('''v_lshrrev_b32 v20, 5, v0
         v_bfe_u32 v21, v0, 4, 1
         v_bfe_u32 v22, v0, 2, 2
         v_and_b32 v23, 3, v0''')
    e('''v_lshl_add_u32 v8, v20, 3, v22
         v_lshlrev_b32 v8, 8, v8
         v_lshl_add_u32 v8, v22, 6, v8
         v_lshl_add_u32 v8, v21, 5, v8
         v_and_b32 v16, 1, v23
         v_lshrrev_b32 v17, 1, v23
         v_lshl_add_u32 v16, v16, 1, v17
         v_lshl_add_u32 v8, v16, 3, v8
         v_add_u32 v8, s64, v8
         v_xor_b32 v9, 64, v8
         v_xor_b32 v10, 128, v8
         v_xor_b32 v11, 192, v8''')
    e('''v_lshl_add_u32 v29, v20, 2, v22
         v_lshlrev_b32 v29, 8, v29
         v_lshl_add_u32 v29, v22, 6, v29
         v_lshl_add_u32 v29, v21, 5, v29
         v_lshl_add_u32 v29, v23, 3, v29
         v_add_u32 v29, s65, v29''')
    e('''v_lshl_add_u32 v31, v20, 2, v22
         v_lshlrev_b32 v31, 7, v31
         v_lshrrev_b32 v16, 1, v22
         v_lshl_add_u32 v31, v16, 6, v31
         v_lshl_add_u32 v31, v21, 5, v31
         v_lshl_add_u32 v31, v23, 3, v31
         v_add_u32 v31, s64, v31''')
    e(f'''v_and_b32 v16, 31, v0
         v_bfe_u32 v17, v0, 1, 3
         v_xor_b32 v17, v17, v20
         v_lshlrev_b32 v17, 4, v17
         v_lshl_add_u32 v12, v16, 7, v17
         v_add_u32 v12, {XB}, v12
         v_xor_b32 v13, 32, v12
         v_xor_b32 v14, 64, v12
         v_xor_b32 v15, 96, v12
         v_and_b32 v17, 15, v0
         v_xor_b32 v17, v17, v20
         v_lshlrev_b32 v17, 4, v17
         v_lshl_add_u32 v30, v16, 8, v17
         v_add_u32 v30, s65, v30''')
    e('s_lshl_b32 s79, s34, 2')
    for i in range(4):
        e(f's_add_u32 s3, s32, {i}\ns_and_b32 s3, s3, 3\ns_add_u32 s3, s3, s79\ns_mul_i32 s{68+i}, s3, 163840')
    e('s_lshr_b32 s3, s32, 1\ns_add_u32 s74, s3, 8\ns_add_u32 s73, s32, 4\ns_mov_b32 s72, s32')
    e('s_lshl_b32 s4, s33, 4\ns_add_u32 s4, s4, s35\ns_mul_i32 s4, s4, 10')
    for r in range(3):
        e(f'''s_add_u32 s{72+r}, s{72+r}, s81
              s_sub_u32 s3, s{72+r}, 10
              s_cmp_ge_u32 s{72+r}, 10
              s_cselect_b32 s{72+r}, s3, s{72+r}
              s_add_u32 s3, s4, s{72+r}
              s_lshl_b32 s3, s3, 3
              s_add_u32 s3, s3, s34
              s_lshl_b32 s{76+r}, s3, 13
              s_lshl_b32 s{72+r}, s{72+r}, 7''')
    if o.get('pre'):
        for i in range(1, 4): e(f's_add_u32 s3, s32, {i}\ns_and_b32 s3, s3, 3\ns_sub_u32 s3, s3, s32\ns_lshl_b32 s{39+i}, s3, 13')
    def tlb_pf():
        e('s_lshl_b32 s4, s33, 4\ns_add_u32 s4, s4, s35\ns_mul_i32 s4, s4, 655360\ns_lshl_b32 s3, s34, 13\ns_add_u32 s3, s3, s4\nv_min_u32 v72, 9, v0\nv_lshlrev_b32 v72, 16, v72')
        e.vm('buffer_load_dword v73, v72, s[28:31], s3 offen sc1', ('tlb',))
    if o.get('tlb') == -1: tlb_pf()
    PFS = o.get('pfs', 128)
    if o.get('pf') or o.get('pfT'): e(f's_mul_i32 s43, s67, 163840\ns_mul_i32 s3, s35, 10240\ns_add_u32 s43, s43, s3\nv_mul_u32_u24 v64, {PFS}, v0')
    def pf(q):
        off = min(q*64*PFS, 10240 - 64*PFS)
        return lambda: e(f's_add_u32 s79, s43, {off}\nbuffer_load_dword v{65+q}, v64, s[24:27], s79 offen {o.get("pfm", "")}')
    c = (128 ** -0.5) * math.log2(math.e)
    import struct
    e(f's_mov_b32 s80, {hex(struct.unpack("<I", struct.pack("<f", c))[0])}')
    AF, BF, ACC = 96, 80, 128
    def reads_q(t):
        b = t & 1; L = []
        s = t >> 2; tt = t & 3
        for qb in range(2):
            L.append(lambda qb=qb: e.lg(f'ds_read_b128 {vr(BF+b*8+qb*4,4)}, v{12+tt} offset:{(s%XS)*8192+qb*4096}', ('f', t)))
        for db in range(4):
            for u in range(2):
                L.append(lambda db=db, u=u: e.lg(f'ds_read_b64_tr_b16 {vr(AF+b*16+db*4+2*u,2)}, v{8+db} offset:{(t%R)*4096+u*1024}', ('f', t)))
        return L
    def copy_items(j):
        L = []
        if j < 2:
            for t in range(8):
                def f(t=t):
                    if t: e(f'v_xor_b32 v{16+t}, {t*32}, v30')
                    e.lg(f'ds_read_b128 {vr(j*32+t*4,4,"a")}, v{16+t if t else 30}', ('c', j))
                L.append(f)
        else:
            for db in range(4):
                for t in range(2):
                    for u in range(2):
                        def f(db=db, t=t, u=u):
                            if db and t == 0 and u == 0: e(f'v_xor_b32 v{16+db}, {db*64}, v29')
                            e.lg(f'ds_read_b64_tr_b16 {vr(j*32+(db*2+t)*4+2*u,2,"a")}, v{16+db if db else 29} offset:{(16*t+8*u)*256}', ('c', j))
                        L.append(f)
        return L
    PRE = o.get('pre', 0)
    FB = {k: ('a', 192 + (k & 1)*16) for k in range(40)}; TK = {k: k - 1 for k in range(40)}
    if PRE:
        pool = [['a', 128+16*q, -9, 7] for q in range(4)] + [['a', 192+16*q, -9, 99] for q in range(4)]
        pool += [['v', 32+16*q, -3, o.get('jc', 36) - 1] for q in range(2)] + [['v', 192+16*q, 1, 15] for q in range(4)]
        NA = o.get('na', 8); prev = 0
        for k in range(40):
            T = -1 if k < NA else max(prev + 1, min(k - 1, o.get('t8', 1) + int(o.get('sl', 1.19)*(k - NA))))
            while True:
                c = [p for p in pool if p[2] <= T and p[3] >= k]
                if c: break
                T += 1
            assert T <= k - 1 or k < NA, (k, T)
            p = min(c, key=lambda p: (p[3], p[2])); p[2] = k + 1
            FB[k] = (p[0], p[1]); TK[k] = T; prev = max(T, 0)
        o['_sched'] = [(k, TK[k], FB[k]) for k in range(40)]
    def fr(j, q, n): return vr(FB[j][1] + q, n, FB[j][0])
    def reads_o(j):
        n = 40 + j; L = []
        for tt in range(2):
            for nb in range(2):
                for u in range(2):
                    L.append(lambda tt=tt, nb=nb, u=u: e.lg(f'ds_read_b64_tr_b16 {fr(j, (tt*2+nb)*4+2*u, 2)}, v{6+nb} offset:{(n%R)*4096+(16*tt+8*u)*128}', ('f', n)))
        return L
    def run_gaps(mfmas, gaps):
        for g, m in enumerate(mfmas):
            e(m)
            for f in gaps[g]: f()
    def wo_voff():
        e('''v_lshrrev_b32 v2, 3, v0
             v_bfe_u32 v3, v0, 4, 1
             v_lshlrev_b32 v3, 2, v3
             v_and_b32 v4, 7, v0
             v_xor_b32 v3, v3, v4
             v_mul_u32_u24 v2, 1280, v2
             v_lshl_add_u32 v2, v3, 4, v2
             v_add_u32 v3, 9216, v2
             v_add_u32 v4, 18432, v2
             v_add_u32 v5, 27648, v2''')
    e.wait(vm=[('x', 0), ('w', 0)]); e('s_barrier')
    for f in reads_q(0): f()
    kvT = o['kvT']
    copy_sched = {}; late = []; stag = o.get('stag'); NC = o.get('NC', 4); CS = o.get('CS', 2)
    kv_at = {}; cp_at = {}
    lab = [0]
    def ghost(c, fs):
        def f():
            lab[0] += 1; sv = (list(e.vmq), list(e.lgq))
            e(f's_cmp_lg_u32 s5, {c}\ns_cbranch_scc1 Lg{lab[0]}')
            e.lgq = []
            if len(fs) > 5: e('s_waitcnt lgkmcnt(7)')
            for g in fs: g()
            e(f'Lg{lab[0]}:'); e.vmq, e.lgq = sv
        return f
    for j in range(4):
        it = copy_items(j)
        if stag:
            for c in range(NC):
                T = kvT[j] + CS*c
                kv_at.setdefault(T, []).append(ghost(c, dma_kv(j) + [pf(q) for q in o.get('pf', {}).get(str(j), [])]))
                if j < 3:
                    h = len(it)//2
                    cp_at.setdefault(T + R, []).append(ghost(c, it[:h])); cp_at.setdefault(T + R + 1, []).append(ghost(c, it[h:]))
                else: assert T <= 39 - R - 1
            if j == 3: late = it
            continue
        if kvT[j] + R + (len(it)-1)//4 > 39:
            assert j == 3; late = it; continue
        for q in range(0, len(it), 4): copy_sched.setdefault(kvT[j] + R + q//4, []).extend([(j, f) for f in it[q:q+4]])
    for t in range(40):
        b = t & 1
        e.wait(lg=[('f', t)])
        trace(1, t)
        gaps = [[] for _ in range(8)]
        if t % 4 == 3 and t < 39:
            e.wait(vm=[('x', (t >> 2) + 1)])
            if not o.get('nobar'): e('s_barrier')
        for k, n in enumerate(ring_at.get(t, [])):
            d = dma_ring(n)
            if n == 40: d[0] = (lambda f=d[0]: (wo_voff(), f()))
            if k == 0:
                gaps[0] += [d[0], d[1]]; gaps[1] += [d[2]]; gaps[2] += [d[3]]; gaps[3] += [d[4], d[5]]
            else: gaps[5 + k] += d
        if t < 39:
            rd = reads_q(t + 1)
            gaps[1].append(lambda t=t: e.wait(vm=[('w', t + 1)]))
            for i, f in enumerate(rd): gaps[1 + i//2].append(f)
        for s_ in x_at.get(t, []): gaps[4].append(dma_x(s_))
        if t == o.get('tlb'): gaps[5].append(tlb_pf)
        if FU and t and t == o.get('clrT'): gaps[5].append(lambda: mb_clear2(e, o))
        for q, T_ in enumerate(o.get('pfT', [])):
            if T_ == t: gaps[5].append(pf(q))
        if stag:
            gaps[6] += cp_at.get(t, []); gaps[7] += kv_at.get(t, [])
        elif t in kvT:
            kv = dma_kv(kvT.index(t)); gaps[5].append(kv[0]); gaps[6].append(kv[1])
        if t in copy_sched:
            j0 = copy_sched[t][0][0]
            gaps[6].append(lambda j0=j0: e.wait(vm=[('kv', j0)]))
            for i, (j, f) in enumerate(copy_sched[t]): gaps[6 + i//2].append(f)
        order = [(db, qb) for db in range(4) for qb in range(2)] if t < 39 else [(db, qb) for qb in range(2) for db in range(4)]
        ms = [mf(vr(ACC+qb*64+db*16,16), vr(AF+b*16+db*4,4), vr(BF+b*8+qb*4,4), vr(ACC+qb*64+db*16,16) if t else '0') for db, qb in order]
        if PRE and t == 38:
            gaps[0].append(lambda: e('v_mov_b32 v6, v31\nv_xor_b32 v7, 64, v31'))
            for q, f in enumerate(late[:8]): gaps[[0, 0, 6, 6, 6, 7, 7, 7][q]].append(f)
        if PRE and t == 39:
            for q, f in enumerate(late[8:]): gaps[[0, 0, 1, 1, 1, 2, 2, 2][q]].append(f)
            for q in range(32):
                gaps[[3, 4, 5, 6, 7][min(4, (q + 2)//7)]].append(lambda q=q: e(f'v_cvt_pk_bf16_f32 v{32+q}, v{ACC+2*q}, v{ACC+2*q+1}'))
        run_gaps(ms, gaps)
    stamp()
    QP = [32, 64]; S = [96, 16]; P = [112, 120]; OA = [128, 192]; OP = [64, 96]
    if not PRE: e('v_mov_b32 v6, v31\nv_xor_b32 v7, 64, v31')
    def cvtq(qb):
        return [f'v_cvt_pk_bf16_f32 v{QP[qb]+i}, v{ACC+qb*64+2*i}, v{ACC+qb*64+2*i+1}' for i in range(32)]
    def qk(qb):
        return [mf(vr(S[qb],16), vr(qb*32+t*4,4,'a'), vr(QP[qb]+t*4,4), vr(S[qb],16) if t else '0') for t in range(8)]
    def softmax(qb):
        s = S[qb]; m, t2, l = (8, 9, 10) if qb == 0 else (12, 13, 14)
        L = [f'v_max3_f32 v{m}, v{s}, v{s+1}, v{s+2}', f'v_max3_f32 v{t2}, v{s+3}, v{s+4}, v{s+5}']
        L += [f'v_max3_f32 v{m}, v{m}, v{s+6}, v{s+7}', f'v_max3_f32 v{t2}, v{t2}, v{s+8}, v{s+9}']
        L += [f'v_max3_f32 v{m}, v{m}, v{s+10}, v{s+11}', f'v_max3_f32 v{t2}, v{t2}, v{s+12}, v{s+13}']
        L += [f'v_max3_f32 v{m}, v{m}, v{s+14}, v{s+15}', f'v_max_f32 v{m}, v{m}, v{t2}', f'v_mov_b32 v{t2}, v{m}']
        L += [f'v_permlane32_swap_b32 v{m}, v{t2}', f'v_max_f32 v{m}, v{m}, v{t2}', f'v_mul_f32 v{m}, s80, v{m}']
        for i in range(16): L.append(f'v_fma_f32 v{s+i}, v{s+i}, s80, -v{m}')
        for i in range(16): L.append(f'v_exp_f32 v{s+i}, v{s+i}')
        L += [f'v_add_f32 v{l}, v{s}, v{s+1}', f'v_add_f32 v{t2}, v{s+2}, v{s+3}']
        for i in range(4, 16, 2): L += [f'v_add_f32 v{l}, v{l}, v{s+i}', f'v_add_f32 v{t2}, v{t2}, v{s+i+1}']
        L += [f'v_add_f32 v{l}, v{l}, v{t2}', f'v_mov_b32 v{t2}, v{l}', f'v_permlane32_swap_b32 v{l}, v{t2}', f'v_add_f32 v{l}, v{l}, v{t2}', f'v_rcp_f32 v{l}, v{l}']
        for i in range(16): L.append(f'v_mul_f32 v{s+i}, v{s+i}, v{l}')
        for i in range(8): L.append(f'v_cvt_pk_bf16_f32 v{P[qb]+i}, v{s+2*i}, v{s+2*i+1}')
        return L
    def pv(qb):
        return [mf(vr(OA[qb]+db*16,16), vr(64+qb*32+(db*2+t)*4,4,'a'), vr(P[qb]+t*4,4), vr(OA[qb]+db*16,16) if t else '0') for t in range(2) for db in range(4)]
    def cvto(qb):
        L = []
        for t in range(8):
            for i in range(4): L.append(f'v_cvt_pk_bf16_f32 v{OP[qb]+t*4+i}, v{OA[qb]+t*8+2*i}, v{OA[qb]+t*8+2*i+1}')
            L.append(('w', qb, t))
        return L
    def emit_item(x):
        if isinstance(x, tuple):
            _, qb, t = x
            e.lg(f'ds_write_b128 v11, {vr(OP[qb]+t*4,4)} offset:{qb*ODELTA+t*1024}', ('ow',))
        elif callable(x): x()
        else: e(x)
    def inter(ms, fill, start=0, per=None):
        fill = list(fill); n = len(ms) - start
        per = per or -(-len(fill) // n)
        for g, m in enumerate(ms):
            e(m)
            if g >= start:
                for x in fill[:per]: emit_item(x)
                fill = fill[per:]
        for x in fill: emit_item(x)
    def RD(k): return [lambda: e.wait(vm=[('w', 40 + k)])] + reads_o(k) if k < NA else []
    def DM(k):
        if k - 6 >= NA - 1: return []
        d = dma_ring(40 + k); return [lambda: (e.wait(lg=[('f', 34 + k)]), d[0]())] + d[1:5]
    def mix(L, ex):
        L = list(L)
        for pos, it in sorted(ex, key=lambda x: -x[0]): L[pos:pos] = it
        return L
    if PRE:
        c1 = cvtq(1); ms = qk(0); rr = RD(0) + RD(1)
        rr = [rr[0:3], rr[3:5], rr[5:7], rr[7:9], rr[9:12], rr[12:14], rr[14:16], rr[16:18]]
        for g, m in enumerate(ms):
            e(m)
            for x in c1[4*g:4*g+4]: e(x)
            for f in rr[g]: f()
        e(f'v_lshlrev_b32 v11, 4, v0\ns_lshl_b32 s79, s32, 13\ns_add_u32 s79, s79, {XB}\nv_add_u32 v11, s79, v11')
        ms = qk(1)
        e(ms[0])
        for f in DM(6): f()
        e(ms[1])
        for f in RD(2): f()
        a0 = o.get('a0', (10, 25, 40, 60, 70)); a1 = o.get('a1', (0, 15, 35, 50, 70))
        inter(ms[2:], mix(softmax(0), zip(a0, [DM(7), DM(8), RD(3), DM(9), RD(4)])), per=6)
        inter(pv(0), mix(softmax(1), zip(a1, [DM(10), RD(5), DM(11), RD(6), DM(12)])), per=6)
        e.wait(lg=[('c', 3)])
        e('s_barrier')
        c0 = cvto(0); rr = RD(7)
        OWD = o.get('owd', 0); ows = {}
        for q in range(16 if OWD else 0):
            g_ = max((q*OWD)//16, q); ows.setdefault(g_, []).append(('w', q >> 3, q & 7))
        if rr: rr[0]()
        for g, m in enumerate(pv(1)):
            e(m)
            for x in c0[5*g:5*g+(4 if OWD else 5)]: emit_item(x)
            for x in ows.get(g, []): emit_item(x)
            if rr: rr[1 + g]()
    else:
        e.wait(lg='*')
        for x in cvtq(0): e(x)
        if late:
            c1 = cvtq(1); ms = qk(0)
            for g, m in enumerate(ms):
                e(m)
                for x in c1[4*g:4*g+4]: e(x)
                if g == 3: e.wait(vm=[('kv', 3)])
                if g >= 4:
                    for f in late[4*(g-4):4*(g-4)+4]: f()
        else: inter(qk(0), cvtq(1))
        sm0 = softmax(0); sm1 = softmax(1)
        e(f'v_lshlrev_b32 v11, 4, v0\ns_lshl_b32 s79, s32, 13\ns_add_u32 s79, s79, {XB}\nv_add_u32 v11, s79, v11')
        inter(qk(1), sm0, start=2, per=5)
        inter(pv(0), sm1, start=0, per=5)
        e.wait(lg=[('c', 3)])
        e('s_barrier')
        e.wait(vm=[('w', 40)])
        for f in reads_o(0): f()
        c0 = cvto(0)
        inter(pv(1), c0, start=1, per=5)
        for i in range(1, 4):
            e(f's_add_u32 s79, s32, {i}\ns_and_b32 s79, s79, 3\ns_lshl_b32 s79, s79, 13\ns_add_u32 s79, s79, {XB}\nv_lshlrev_b32 v{7+i}, 4, v0\nv_add_u32 v{7+i}, s79, v{7+i}')
        e('v_lshlrev_b32 v12, 4, v0')
        for x in cvto(1): emit_item(x)
        if FU: tail_consts(e, o)
    stamp()
    def oreads(i):
        return [lambda qb=qb, t=t: e.lg(f'ds_read_b128 {vr((i-1)*64+qb*32+t*4,4,"a")}, v{7+i} offset:{qb*ODELTA+t*1024}', ('ob', i, t//2)) for t in range(8) for qb in range(2)]
    osched = {}
    r1 = oreads(1)
    osched[1] = r1[:6]; osched[2] = r1[6:11]; osched[3] = r1[11:]
    BJ = o.get('bj', 1)
    if BJ == 2: osched = {2: r1[:8], 3: r1[8:]}
    if BJ == 3: osched = {3: r1}
    for i in (2, 3):
        rr = oreads(i)
        for q in range(4): osched[4*(i-1) + q] = rr[4*q:4*q+4]
    def store_items(r):
        A = ACC + (r & 1)*64; L = []
        for bi in range(8):
            T = A + (bi >> 1)*16 + (bi & 1)*8
            L.append(lambda T=T: e(f'v_cvt_pk_bf16_f32 v{T}, v{T}, v{T+1}\nv_cvt_pk_bf16_f32 v{T+1}, v{T+2}, v{T+3}'))
            def f(T=T, bi=bi):
                e(f'v_cvt_pk_bf16_f32 v{T+2}, v{T+4}, v{T+5}\nv_cvt_pk_bf16_f32 v{T+3}, v{T+6}, v{T+7}')
                e(f'v_permlane32_swap_b32 v{T}, v{T+2}\nv_permlane32_swap_b32 v{T+1}, v{T+3}')
                if bi == 4: e(f's_add_u32 s{76+r}, s{76+r}, 4096')
                if not o.get('nost'): e.vm(f'buffer_store_dwordx4 {vr(T,4)}, v12, s[28:31], s{76+r} offen offset:{(bi&3)*1024} {o["st"]}', ('st', r))
            L.append(f)
        return L
    fl = dict(f0=None)
    for j in range(40):
        n = 40 + j; r, i, sb = oinfo(j)
        kp = [k for k in range(40) if (TK[k] == j - 1 and (not PRE or k >= NA)) or (PRE and j == 0 and k == NA - 1)]
        e.wait(lg=[('f', n)] + [('f', 40 + k) for k in kp if j or not PRE] + ([('ob', i, sb if (i == 1 and BJ > 1) else 3)] if (i and r == 0) else []))
        trace(31, j)
        if j == BJ:
            e.wait(lg=[('ow',)]); e('s_barrier')
        gaps = [[] for _ in range(8)]
        d = dma_ring(ring_at[n][0]) if n in ring_at else None
        if PRE: d = dma_ring(46 + kp[0]) if kp else None
        if d and PRE and j == 0:
            gaps[3] += [lambda: e.wait(lg=[('f', 39 + NA)]), d[0], d[1]]; gaps[4] += [d[2]]; gaps[5] += [d[3]]; gaps[6] += [d[4]]
        elif d:
            gaps[0] += [d[0], d[1]]; gaps[1] += [d[2]]; gaps[2] += [d[3]]; gaps[3] += [d[4]]
        for k in range(40):
            if TK[k] != j or (PRE and k < NA): continue
            gaps[1].append(lambda k=k: e.wait(vm=[('w', 40 + k)]))
            for q, f in enumerate(reads_o(k)): gaps[1 + q//2].append(f)
        if PRE:
            if j == 0:
                c1 = cvto(1)
                for g in range(8): gaps[g] += [lambda x=x: emit_item(x) for x in c1[5*g:5*g+(4 if OWD else 5)]]
            for g in range(8): gaps[g] += [lambda x=x: emit_item(x) for x in ows.get(8*j + 8 + g, [])]
            if j in (0, 3, 7): gaps[7].append(lambda i_={0: 1, 3: 2, 7: 3}[j]: e(f'v_add_u32 v{7+i_}, s{39+i_}, v11'))
            if j == 12:
                tc = []; tail_consts(lambda t_: tc.extend([x for x in t_.split('\n') if x.strip()]), o); tc.append('v_lshlrev_b32 v12, 4, v0')
                if o.get('cut'): tc += ['v_mov_b32 v24, 0x10000000', f'v_cmp_gt_u32 vcc, {o["cut"]}, v0', 'v_cndmask_b32 v12, v24, v12, vcc'] + ([f'v_cmp_gt_u32 vcc, {o["cutr"]}, v0', 'v_cndmask_b32 v19, v24, v19, vcc'] if o.get('cutr') else [])
                fl['tc'] = tc if FU else tc[-1:]
            if 12 <= j <= 15:
                for g in range(4, 8):
                    gaps[g].append(lambda x=fl['tc'][:5]: e('\n'.join(x))); fl['tc'] = fl['tc'][5:]
                assert j < 15 or not fl['tc']
        for q, f in enumerate(osched.get(j, [])): gaps[8 - max(3, len(osched[j])//2) + q//2].append(f)
        if r >= 1:
            it = store_items(r - 1)
            if FU:
                nsl = o.get('sp0', 8) if r == 1 else o.get('sp1', 4); per = 16 // nsl
                pos = [(((q >> 1)*nsl)//8, 4 + 2*(q & 1)) for q in range(16)] if nsl > 8 else [(q // per, {1: [5], 2: [4, 6], 4: [4, 5, 6, 7], 8: [4, 4, 5, 5, 6, 6, 7, 7]}[per][q % per]) for q in range(16)]
            elif o['spread']:
                nsl = 16 if r == 1 else 8
                pos = [((q*nsl)//16, (4 if q % 2 == 0 else 6) if nsl == 8 else 5) for q in range(16)]
            else: pos = [(0, g) for g in range(3, 8)] + [(1, g) for g in range(8)] + [(2, g) for g in range(8)]
            for q, f in enumerate(it):
                if pos[q][0] == (j & 15): gaps[pos[q][1]].append(f)
        if FU:
            def flag0():
                if fl['f0'] is None and ('st', 0) not in e.vmq:
                    fl['f0'] = 1; e.vm(flag(o, 0, 'v14', 's50'), ('fl', 0))
            if j == o.get('f0'): gaps[2].append(lambda: e.wait(vm=[('st', 0)]))
            if j >= 16 + o.get('sp0', 8): gaps[2].append(flag0)
            if o.get('early', 1):
                if j == o.get('jp', 33): gaps[7].append(lambda: e.vm(poll(o), ('poll',)))
                if j == o.get('jc', 36) and not o.get('e2'): gaps[3].append(lambda: early_check(e, o))
        A = ACC + (r & 1)*64
        ms = []
        for tt in range(2):
            t = 2*sb + tt
            for qb in range(2):
                for nb in range(2):
                    B = vr(OP[qb]+t*4, 4) if i == 0 else vr((i-1)*64+qb*32+t*4, 4, 'a')
                    T = vr(A+(nb*2+qb)*16, 16)
                    first = (i == 0 and sb == 0 and tt == 0)
                    ms.append((qb if (PRE and j == 0) else 0, mf(T, fr(j, (tt*2+nb)*4, 4), B, '0' if first else T)))
        ms = [m for _, m in sorted(ms, key=lambda x: x[0])]
        run_gaps(ms, gaps)
    stamp()
    if o.get('trace'): e('s_nop 7\ns_nop 7\nv_accvgpr_write_b32 a255, v31')
    if FU:
        assert fl['f0'] == 1 and (not e.vmq or e.vmq[-1] == ('st', 1) or o.get('e2')), e.vmq
        if not o.get('f1late'): flag1(e, o)
        if o.get('e2'):
            e.vmq = []; early_check(e, o)
    e(f'''v_lshlrev_b32 v9, 4, v0
          v_add_u32 v8, s64, v9
          s_xor_b32 s79, s32, 1
          s_mul_i32 s79, s79, {RINGB}
          v_add_u32 v9, s79, v9
          s_add_u32 s3, s78, 4096
          s_bitcmp1_b32 s32, 0
          s_cbranch_scc1 L_odd''')
    e('@save fin')
    sv = (list(e.vmq), list(e.lgq))
    for par in range(2):
        if par:
            e('L_odd:'); e('@restore fin'); e.vmq, e.lgq = list(sv[0]), list(sv[1])
        for nb in range(2):
            T = ACC + (nb*2 + 1 - par)*16
            for c4 in range(4): e.lg(f'ds_write_b128 v8, {vr(T+4*c4,4)} offset:{(nb*4+c4)*1024}', ('xw',))
        e.wait(lg='*'); e('s_barrier')
        for q in range(8): e.lg(f'ds_read_b128 {vr(192+4*q,4)}, v9 offset:{q*1024}', ('xr', q//2))
        for nb in range(2):
            for G in range(2):
                T = ACC + (nb*2 + par)*16 + 8*G; X = 192 + nb*16 + 8*G
                e.wait(lg=[('xr', nb*2 + G)])
                for q in range(8): e(f'v_add_f32 v{T+q}, v{T+q}, v{X+q}')
                for q in range(4): e(f'v_cvt_pk_bf16_f32 v{T+q}, v{T+2*q}, v{T+2*q+1}')
                e(f'v_permlane32_swap_b32 v{T}, v{T+2}\nv_permlane32_swap_b32 v{T+1}, v{T+3}')
                e.vm(f'buffer_store_dwordx4 {vr(T,4)}, v12, s[28:31], {"s3" if nb else "s78"} offen offset:{par*2048+G*1024} {o["st"]}', ('st', 2))
        if par == 0: e('s_branch L_fin')
    e('L_fin:')
    if o.get('fuse') and o.get('f1late'): flag1(e, o, 4)
    if o.get('fuse'): fused_tail(e, o, stamp)
    if o['stamps']:
        e('s_waitcnt vmcnt(0)'); stamp()
        e(f's_memrealtime s[98:99]\ns_lshl_b32 s3, s2, 2\ns_add_u32 s3, s3, s32\ns_lshl_b32 s3, s3, 7\ns_add_u32 s3, s3, {STAMP_WS}\ns_waitcnt lgkmcnt(0)')
        if o.get('trace'):
            e(f's_lshl_b32 s4, s2, 2\ns_add_u32 s4, s4, s32\ns_lshl_b32 s4, s4, 9\ns_add_u32 s4, s4, {STAMP_WS+0x200000}\nv_lshlrev_b32 v2, 2, v0')
            e('v_accvgpr_read_b32 v11, a255\ns_nop 1\nbuffer_store_dword v1, v2, s[28:31], s4 offen\nbuffer_store_dword v11, v2, s[28:31], s4 offen offset:256\ns_waitcnt vmcnt(0)')
        e('v_mov_b32 v1, 0\nv_cmp_eq_u32 vcc, 0, v0\ns_and_saveexec_b64 s[4:5], vcc')
        for q in range(ns[0]): e(f'v_mov_b32 v2, s{82+2*q}\nbuffer_store_dword v2, v1, s[28:31], s3 offen offset:{4*q}')
        e(f'v_mov_b32 v2, s100\nbuffer_store_dword v2, v1, s[28:31], s3 offen offset:64\nv_mov_b32 v2, s98\nbuffer_store_dword v2, v1, s[28:31], s3 offen offset:68')
    e('L_end1:\ns_endpgm')
    txt = e.finish()
    return txt, e

def k2(o):
    e = Em()
    e('s_cmp_ge_u32 s2, 256\ns_cbranch_scc1 L_end2')
    e('s_load_dwordx2 s[8:9], s[0:1], 96\ns_load_dwordx2 s[12:13], s[0:1], 80')
    if o['stamps']: e('s_memrealtime s[100:101]')
    e('v_lshrrev_b32 v1, 6, v0\nv_and_b32 v0, 63, v0\nv_readfirstlane_b32 s20, v1')
    e('s_mul_i32 s21, s2, 5\ns_add_u32 s21, s21, s20')
    e('s_lshr_b32 s22, s21, 2\ns_and_b32 s23, s21, 3')
    e('s_lshl_b32 s24, s22, 16\ns_lshl_b32 s25, s23, 11\ns_add_u32 s24, s24, s25')
    e('v_lshlrev_b32 v1, 4, v0')
    e(f's_mov_b32 s10, {0x10000000}\ns_mov_b32 s11, 0x20000\ns_mov_b32 s14, 2621440\ns_mov_b32 s15, 0x20000')
    e('s_waitcnt lgkmcnt(0)')
    for hg in range(8):
        for G in range(2): e.vm(f'buffer_load_dwordx4 {vr(16+hg*8+G*4,4)}, v1, s[8:11], s24 offen offset:{G*1024} {o["rd"]}', hg)
        if hg < 7: e('s_add_u32 s24, s24, 8192')
    e('''s_mul_i32 s26, s22, 6554
         s_lshr_b32 s26, s26, 16
         s_mul_i32 s27, s26, 10
         s_sub_u32 s27, s22, s27
         s_lshr_b32 s28, s26, 4
         s_and_b32 s26, s26, 15
         s_mul_i32 s26, s26, 163840
         s_mul_i32 s28, s28, 1280
         s_add_u32 s26, s26, s28
         s_lshl_b32 s27, s27, 7
         s_add_u32 s26, s26, s27
         s_lshr_b32 s27, s23, 1
         s_lshl_b32 s27, s27, 6
         s_add_u32 s26, s26, s27
         s_and_b32 s27, s23, 1
         s_mul_i32 s27, s27, 81920
         s_add_u32 s26, s26, s27
         v_and_b32 v2, 31, v0
         v_lshrrev_b32 v3, 5, v0
         v_mul_u32_u24 v2, 2560, v2
         v_lshl_add_u32 v2, v3, 4, v2''')
    A = 80
    for hg in range(8):
        e.wait(vm=[hg])
        for q in range(8):
            x = 16 + hg*8 + q
            if hg == 0: e(f'v_lshlrev_b32 v{A+2*q}, 16, v{x}\nv_and_b32 v{A+2*q+1}, 0xffff0000, v{x}')
            else: e(f'v_lshlrev_b32 v4, 16, v{x}\nv_and_b32 v{x}, 0xffff0000, v{x}\nv_add_f32 v{A+2*q}, v{A+2*q}, v4\nv_add_f32 v{A+2*q+1}, v{A+2*q+1}, v{x}')
    for q in range(8): e(f'v_cvt_pk_bf16_f32 v{8+q}, v{A+2*q}, v{A+2*q+1}')
    for G in range(2):
        e(f'buffer_store_dwordx4 {vr(8+4*G,4)}, v2, s[12:15], s26 offen offset:{G*32}')
    if o['stamps']:
        e('s_waitcnt vmcnt(0)')
        e(f's_memrealtime s[98:99]\ns_lshl_b32 s3, s21, 7\ns_add_u32 s3, s3, {STAMP_WS+0x100000}\ns_waitcnt lgkmcnt(0)')
        e('v_mov_b32 v1, 0\nv_cmp_eq_u32 vcc, 0, v0\ns_and_saveexec_b64 s[4:5], vcc')
        e(f'v_mov_b32 v2, s100\nbuffer_store_dword v2, v1, s[8:11], s3 offen offset:64\nv_mov_b32 v2, s98\nbuffer_store_dword v2, v1, s[8:11], s3 offen offset:68')
    e('L_end2:\ns_endpgm')
    return e.finish(), e

def header():
    L = open('cdna_kernels/' + NAME + '.s.ref').read().split('\n')
    return [l for l in L if l.startswith(';') and '@launch' not in l]
def build_text(hdr=None, **kw):
    o = dict(DEF); o.update(kw)
    t1, e1 = k1(o); t2, e2 = k2(o)
    if o.get('fuse'):
        return module((hdr or []) + ['; @launch grid=(256,1,1) block=(256,1,1) lds=163840'], [(NAME + '_kernel', t1, 512, 256, 102)]), e1
    lines = (hdr or []) + [f'; @launch kernel={NAME}_kernel grid=(256,1,1) block=(256,1,1) lds=163840',
                           f'; @launch kernel=reduce_kernel grid=(256,1,1) block=(320,1,1) lds=0']
    return module(lines, [(NAME + '_kernel', t1, 512, 256, 102), ('reduce_kernel', t2, 96, 96, 102)]), e1
if __name__ == '__main__':
    t, e1 = build_text(header())
    out = sys.argv[1] if len(sys.argv) > 1 else 'k.s'
    open(out, 'w').write(t)
    print('lines', t.count('\n'), 'nops', e1.nops, 'maxvm', e1.maxvm, 'maxlg', e1.maxlg)
```

```python
MB = 0x2000000
OOB = 0x10000000
MS = [0]
def vr(b, n, k='v'): return f'{k}[{b}:{b+n-1}]'
def poll(o):
    if o.get('pa'): return f'v_mov_b32 v16, 0\nbuffer_atomic_{o["pa"]} v16, v18, s[28:31], s51 offen sc0 sc1'
    return 'buffer_load_dword v16, v18, s[28:31], s51 offen ' + o.get('pm', 'sc1')
def chk(o): return 'v_readfirstlane_b32 s52, v16\ns_or_b32 s52, s52, s53' if o.get('bm') else 'v_cmp_ne_u32 vcc, 0, v16\ns_or_b32 s52, vcc_lo, s53'
def flag(o, r, va, sa):
    if o.get('bm'): return ('v_lshlrev_b32 v17, 8, v17\n' if r else '') + f'buffer_atomic_or v17, {va}, s[28:31], {sa} offen offset:{96 if r == 3 else 0} sc1'
    if o.get('fa'): return f'buffer_atomic_{o["fa"]} v17, {va}, s[28:31], {sa} offen offset:{r*32} sc1'
    if o.get('fl'): return f'buffer_store_dwordx4 v[16:19], {va}, s[28:31], {sa} offen offset:{r*1024} sc1'
    return f'buffer_store_dword v17, {va}, s[28:31], {sa} offen offset:{r*32} {o.get("fm", "sc1")}'
def mb_clear(e, o):
    K = 5 if o.get('fl') else 0
    e(f"""s_load_dwordx4 s[36:39], s[0:1], 80
          s_lshl_b32 s44, s33, 4
          s_add_u32 s44, s44, s35
          s_lshl_b32 s49, s44, {12+K}
          s_add_u32 s49, s49, {MB}
          s_lshl_b32 s50, s32, {7+K}
          s_add_u32 s50, s50, s49
          s_lshl_b32 s51, s34, {9+K}
          s_add_u32 s51, s51, s50
          s_lshl_b32 s52, s34, {2+K}
          {'' if o.get('bm') else 's_add_u32 s50, s50, s52'}
          """)
    if not o.get('clrT'): mb_clear2(e, o)
def mb_clear2(e, o):
    K = 5 if o.get('fl') else 0
    e(f'v_and_b32 v16, 31, v0\nv_lshlrev_b32 v16, {2+K}, v16\nv_mov_b32 v17, 0')
    e.vm('buffer_store_dword v17, v16, s[28:31], s51 offen offset:%d %s' % (4 if K else 0, o.get('cm', 'sc1')), ('clr',))
def slice_loads(e, r, base, ureg=None):
    e(f's_lshl_b32 s48, s{ureg or 72+r}, 9\ns_add_u32 s48, s48, s45')
    for hg in range(8):
        e(f'buffer_load_dwordx4 {vr(base+hg*4,4)}, v19, s[28:31], s48 offen sc1')
        if hg < 7: e('s_add_u32 s48, s48, 8192')
def slice_sum(e, base, younger, ureg, ost, acc=20, out=28):
    if MS[0]:
        acc = 96 if out == 28 else 112
        for hg in range(8):
            e(f's_waitcnt vmcnt({7 - hg + younger})')
            e(f'v_mfma_f32_32x32x16_bf16 {vr(acc,16)}, v[24:27], {vr(base+hg*4,4)}, {vr(acc,16) if hg else 0}')
        for q in range(4): e(f'v_cvt_pk_bf16_f32 v{out+q}, v{acc+2*q}, v{acc+2*q+1}')
        e(f'v_permlane32_swap_b32 v{out}, v{out+2}\nv_permlane32_swap_b32 v{out+1}, v{out+3}')
        e(f's_add_u32 s48, s42, s{ureg}')
        e(f'buffer_store_dwordx4 {vr(out,4)}, v13, s[12:15], s48 offen {ost}')
        return
    for hg in range(8):
        e(f's_waitcnt vmcnt({7 - hg + younger})')
        for q in range(4):
            x = base + hg*4 + q
            if hg == 0: e(f'v_lshlrev_b32 v{acc+2*q}, 16, v{x}\nv_and_b32 v{acc+2*q+1}, 0xffff0000, v{x}')
            else: e(f'v_lshlrev_b32 v7, 16, v{x}\nv_and_b32 v{x}, 0xffff0000, v{x}\nv_add_f32 v{acc+2*q}, v{acc+2*q}, v7\nv_add_f32 v{acc+2*q+1}, v{acc+2*q+1}, v{x}')
    for q in range(4): e(f'v_cvt_pk_bf16_f32 v{out+q}, v{acc+2*q}, v{acc+2*q+1}')
    e(f's_add_u32 s48, s42, s{ureg}')
    e(f'buffer_store_dwordx4 {vr(out,4)}, v13, s[12:15], s48 offen {ost}')
def cons_base(e, c):
    e(f"""s_lshr_b32 s40, s{c}, 2
          s_and_b32 s41, s{c}, 3
          s_lshl_b32 s40, s40, 11
          s_lshl_b32 s41, s41, 7
          s_add_u32 s40, s40, s41
          s_mul_i32 s45, s44, 655360
          s_add_u32 s45, s45, s40
          s_mul_i32 s42, s35, 163840
          s_mul_i32 s43, s33, 1280
          s_add_u32 s42, s42, s43
          s_mul_i32 s43, s{c}, 20480
          s_add_u32 s42, s42, s43""")
def tail_consts(e, o):
    cons_base(e, 34)
    K = 5 if o.get('fl') else 0
    fv = 'v_lshrrev_b32 v14, 3, v0\nv_lshlrev_b32 v14, 14, v14\nv_and_b32 v17, 7, v0\nv_lshl_add_u32 v14, v17, 4, v14' if K else 'v_lshlrev_b32 v14, 9, v0'
    e(f"""s_mov_b32 s12, s36
          s_mov_b32 s13, s37
          s_mov_b32 s14, 2621440
          s_mov_b32 s16, s38
          s_mov_b32 s17, s39
          s_mov_b32 s18, 256
          s_lshl_b32 s53, 0x010101, s34
          s_mov_b32 s54, 0
          s_mov_b32 s55, {o.get('budget', 1024)}
          s_and_b32 s46, s32, 1
          s_lshl_b32 s47, s46, {7+K}
          s_sub_u32 s47, s50, s47
          s_lshl_b32 s43, s44, 3
          v_mov_b32 v16, {OOB}
          {fv}
          v_lshrrev_b32 v17, {5 if K else 2}, v0
          v_cmp_eq_u32 vcc, s46, v17
          v_cndmask_b32 v15, v16, v14, vcc
          v_cmp_gt_u32 vcc, {64 if K else 8}, v0
          v_cndmask_b32 v14, v16, v14, vcc
          v_lshlrev_b32 v18, {2+K}, v0
          v_add_u32 v18, {4 if K else 0}, v18
          v_cmp_gt_u32 vcc, {1 if o.get('bm') else 24}, v0
          v_cndmask_b32 v18, v16, v18, vcc
          v_lshrrev_b32 v20, 4, v0
          v_lshrrev_b32 v21, 1, v20
          v_and_b32 v20, 1, v20
          v_bfe_u32 v22, v0, 3, 1
          v_and_b32 v23, 7, v0
          v_lshlrev_b32 v19, 12, v21
          v_lshl_add_u32 v19, v20, 10, v19
          v_lshl_add_u32 v19, v22, 9, v19
          v_lshl_add_u32 v19, v23, 4, v19
          v_mul_u32_u24 v13, 2560, v23
          v_lshl_add_u32 v13, v21, 6, v13
          v_lshl_add_u32 v13, v20, 5, v13
          v_lshl_add_u32 v13, v22, 4, v13
          v_mov_b32 v17, 1
          {'v_lshlrev_b32 v17, s34, v17' if o.get('bm') else ''}
          v_mov_b32 v16, 0""")
    MS[0] = o.get('ms', 0)
    if MS[0]:
        e('v_and_b32 v20, 31, v0\nv_lshrrev_b32 v21, 5, v0\nv_lshlrev_b32 v21, 3, v21\nv_sub_u32 v20, v20, v21\nv_and_b32 v21, 1, v20\nv_lshlrev_b32 v21, 4, v21')
        e('v_mov_b32 v22, 0x3f80\nv_lshlrev_b32 v21, v21, v22\nv_ashrrev_i32 v20, 1, v20')
        for q in range(4): e(f'v_cmp_eq_u32 vcc, {q}, v20\nv_cndmask_b32 v{24+q}, 0, v21, vcc')
def early_check(e, o):
    e.wait(vm=[('poll',)])
    e(chk(o) + '\ns_and_b32 s52, s52, 0xff\ns_cmp_lg_u32 s52, 0xff\ns_cbranch_scc1 L_noearly')
    slice_loads(e, 0, 32)
    e('s_mov_b32 s54, 1\nL_noearly:')
def flag1(e, o, y=0):
    e(f"""s_cmp_eq_u32 s54, 0
         s_cbranch_scc1 L_w0
         s_waitcnt vmcnt({8+y})
         s_branch L_w1
         L_w0:
         s_waitcnt vmcnt({y})
         L_w1:""")
    e(flag(o, 3 if o.get('noflag') else 1, 'v14', 's50'))
def fused_tail(e, o, stamp):
    e.vmq = []; e.lgq = []
    ost = o.get('ost', '')
    def spin(name, need):
        e(f"""L_sp{name}:
              {chk(o)}
              s_andn2_b32 s52, {need}, s52
              s_cbranch_scc0 L_ok{name}
              s_sub_u32 s55, s55, 1
              s_cbranch_scc1 L_to{name}
              {poll(o)}
              s_waitcnt vmcnt(0)
              s_branch L_sp{name}
              L_to{name}:
              s_lshl_b32 s52, s34, 2
              s_add_u32 s52, s52, s32
              s_lshl_b32 s52, 1, s52
              v_mov_b32 v4, s52
              v_mov_b32 v5, 0
              buffer_atomic_add_x2 v[4:5], v6, s[16:19], s43 offen sc0 sc1
              s_waitcnt vmcnt(0)
              v_readfirstlane_b32 s52, v5
              s_cmp_lg_u32 s52, 8
              s_cbranch_scc1 L_drop
              s_mov_b32 s53, -1
              L_ok{name}:""")
    e(poll(o))
    e(f"""v_mov_b32 v6, {OOB}
          v_cmp_eq_u32 vcc, 0, v0
          v_cndmask_b32 v6, v6, 0, vcc
          v_mov_b32 v2, 0
          v_mov_b32 v3, 1
          s_cmp_eq_u32 s54, 0
          s_cbranch_scc1 L_t0""")
    slice_sum(e, 32, 5 if o.get('e2') else 6, 72, ost)
    y = 2 if o.get('w2') else 0
    e(f's_waitcnt vmcnt({1+y})\ns_branch L_t1\nL_t0:\ns_waitcnt vmcnt({y})\nL_t1:')
    e(flag(o, 2, 'v15', 's47'))
    e('s_barrier')
    stamp()
    if y: e('s_waitcnt vmcnt(2)\ns_cmp_lg_u32 s54, 0\ns_cbranch_scc1 L_t2\ns_waitcnt vmcnt(1)\nL_t2:')
    spin('a', '0xffff')
    if o.get('par'):
        e('s_cmp_lg_u32 s54, 0\ns_cbranch_scc1 L_t3')
        slice_loads(e, 0, 32)
        e('L_t3:')
        slice_loads(e, 1, 224)
        e('s_bitcmp1_b32 s32, 0\ns_cbranch_scc0 L_even\ns_cmp_lg_u32 s54, 0\ns_cbranch_scc1 L_t4')
        slice_sum(e, 32, 8, 72, ost); slice_sum(e, 224, 1, 73, ost, out=8)
        e('s_branch L_drop\nL_t4:')
        slice_sum(e, 224, 0, 73, ost)
        e('s_branch L_drop\nL_even:')
        spin('b', '0xffffff')
        slice_loads(e, 2, 64)
        e('s_cmp_lg_u32 s54, 0\ns_cbranch_scc1 L_t5')
        slice_sum(e, 32, 16, 72, ost, out=8); slice_sum(e, 224, 9, 73, ost); slice_sum(e, 64, 2, 74, ost, out=8)
        e('s_branch L_drop\nL_t5:')
        slice_sum(e, 224, 8, 73, ost); slice_sum(e, 64, 1, 74, ost, out=8)
    else:
        e('s_cmp_lg_u32 s54, 0\ns_cbranch_scc1 L_t3')
        slice_loads(e, 0, 32); slice_sum(e, 32, 0, 72, ost)
        e('L_t3:')
        slice_loads(e, 1, 224)
        e('s_bitcmp1_b32 s32, 0\ns_cbranch_scc0 L_even')
        slice_sum(e, 224, 0, 73, ost)
        e('s_branch L_drop\nL_even:')
        spin('b', '0xffffff')
        slice_loads(e, 2, 32)
        slice_sum(e, 224, 8, 73, ost)
        slice_sum(e, 32, 1, 74, ost, acc=20, out=8)
    e('L_drop:')
    e("""s_cmp_lg_u32 s32, 1
         s_cbranch_scc1 L_done
         buffer_atomic_add_x2 v[2:3], v6, s[16:19], s43 offen sc0 sc1
         s_waitcnt vmcnt(0)
         v_readfirstlane_b32 s56, v2
         v_readfirstlane_b32 s57, v3
         s_cmp_lg_u32 s57, 7
         s_cbranch_scc1 L_done
         L_fb:
         s_cmp_eq_u32 s56, 0
         s_cbranch_scc1 L_done
         s_ff1_i32_b32 s58, s56
         s_bitset0_b32 s56, s58
         s_lshr_b32 s59, s58, 2
         s_and_b32 s58, s58, 3""")
    cons_base(e, 59)
    e("""s_mov_b32 s60, s58
         L_fb2:
         s_add_u32 s61, s60, s81
         s_sub_u32 s62, s61, 10
         s_cmp_ge_u32 s61, 10
         s_cselect_b32 s61, s62, s61
         s_lshl_b32 s61, s61, 7""")
    slice_loads(e, 0, 32, ureg=61); slice_sum(e, 32, 0, 61, ost)
    e("""s_cmp_ge_u32 s60, 8
         s_cbranch_scc1 L_fb
         s_add_u32 s60, s60, 4
         s_cmp_lt_u32 s60, 8
         s_cbranch_scc1 L_fb2
         s_lshr_b32 s60, s58, 1
         s_add_u32 s60, s60, 8
         s_branch L_fb2
         L_done:""")
```
